```python
import torch

def _softmax(x, axis=-1):
    return torch.softmax(x, dim=axis)
def _gelu(x):
    return torch.nn.functional.gelu(x, approximate="tanh")
def _silu(x):
    return torch.nn.functional.silu(x)
def _sigmoid(x):
    return torch.sigmoid(x)
def _layernorm(x, axis=-1, eps=1e-5):
    m = x.mean(dim=axis, keepdim=True)
    v = x.var(dim=axis, keepdim=True, unbiased=False)
    return (x - m) / torch.sqrt(v + eps)
def _scatter_add(tgt, idx, src, axis=0):
    return tgt.clone().index_add_(axis, idx, src)
def _segment_sum(src, seg, n):
    out = torch.zeros((n,) + src.shape[1:], dtype=src.dtype)
    return out.index_add_(0, seg, src)
def _pad(x, pw):
    flat = tuple(v for pair in reversed(pw) for v in pair)
    return torch.nn.functional.pad(x, flat)

kernel_name = 'sequential_preLN__grouped_kv_mqa__dense_activation_mish__prompt'

def setup_inputs():

    _w = (lambda a: (lambda t: t.to(torch.bfloat16) if t.is_floating_point() else t)(torch.as_tensor(a)))
    def _A_setup():
        B, S, D, H = 1, 2048, 448, 16
        Dh = D // H
        return {
            "x": _w((lambda *s: torch.randn(*s, dtype=torch.bfloat16) * 0.05)(B, S, D)),
            "wq": _w((lambda *s: torch.randn(*s, dtype=torch.bfloat16) * 0.05)(D, H * Dh)),
            "wk": _w((lambda *s: torch.randn(*s, dtype=torch.bfloat16) * 0.05)(D, Dh)),
            "wv": _w((lambda *s: torch.randn(*s, dtype=torch.bfloat16) * 0.05)(D, Dh)),
            "wo": _w((lambda *s: torch.randn(*s, dtype=torch.bfloat16) * 0.05)(H * Dh, D)),
        }
    _A_in = _A_setup()

    def _B_setup():
        B, S, D, F = 1, 2048, 448, 1792
        return {
            "x": _w((lambda *s: torch.randn(*s, dtype=torch.bfloat16) * 0.05)(B, S, D)),
            "w1": _w((lambda *s: torch.randn(*s, dtype=torch.bfloat16) * 0.8)(D, F) * (D ** -0.5)),
            "b1": _w((lambda *s: torch.randn(*s, dtype=torch.bfloat16) * 0.8)(F)),
            "w2": _w((lambda *s: torch.randn(*s, dtype=torch.bfloat16) * 0.2)(F, D) * (F ** -0.5)),
        }
    _B_in = _B_setup()

    return {
        "A_x": _A_in["x"],
        "A_wq": _A_in["wq"],
        "A_wk": _A_in["wk"],
        "A_wv": _A_in["wv"],
        "A_wo": _A_in["wo"],
        "B_x": _B_in["x"],
        "B_w1": _B_in["w1"],
        "B_b1": _B_in["b1"],
        "B_w2": _B_in["w2"],
    }

def reference(A_x, A_wq, A_wk, A_wv, A_wo, B_x, B_w1, B_b1, B_w2):
    def _A_ref(x, wq, wk, wv, wo):
        B, S, D = x.shape
        H = 16
        Dh = D // H
        q = (lambda x, *d: x.permute(*d))((x @ wq).reshape(B, S, H, Dh), 0, 2, 1, 3)
        k = x @ wk
        v = x @ wv
        scores = torch.einsum("bhqd,bkd->bhqk", q, k) * (Dh ** -0.5)
        p = _softmax(scores, axis=-1)
        o = torch.einsum("bhqk,bkd->bhqd", p, v)
        return (lambda x, *d: x.permute(*d))(o, 0, 2, 1, 3).reshape(B, S, H * Dh) @ wo

    def _B_ref(x, w1, b1, w2):
        h = torch.einsum("bsd,df->bsf", x, w1) + b1
        sp = torch.log1p(torch.exp(-torch.abs(h))) + torch.where(h > 0, h, torch.zeros_like(h))
        act = h * torch.tanh(sp)
        return torch.einsum("bsf,fd->bsd", act, w2)

    x = A_x
    h = x + _A_ref(_layernorm(x, axis=-1), A_wq, A_wk, A_wv, A_wo)
    h2 = h + _B_ref(_layernorm(h, axis=-1), B_w1, B_b1, B_w2)
    return h2
```

```python
PROF = {"on": False, "kidx": 0, "off": 0x1060000, "n": 12, "base": 64}

class Asm:
    def stamp(self, i):
        if PROF["on"]:
            B = PROF["base"]
            self(f"s_memrealtime s[{B+2*i}:{B+1+2*i}]")
            if i == 0:
                self("s_memtime s[96:97]")
                for j in range(1, PROF["n"]):
                    self(f"s_mov_b32 s{B+2*j}, 0")

    def cstamp(self, i):
        if PROF["on"]:
            B = PROF["base"]
            self(f"s_memtime s[{B+2*i}:{B+1+2*i}]")

    def end(self):
        if PROF["on"]:
            B, N = PROF["base"], PROF["n"]
            rec = 64 if N <= 14 else 128
            self("s_waitcnt vmcnt(0)")
            self(f"s_memrealtime s[{B+2*(N-1)}:{B+1+2*(N-1)}]")
            self("s_memtime s[98:99]")
            self("s_mov_b64 exec, 1")
            self("s_lshl_b32 s100, s2, 3")
            self("s_add_u32 s100, s100, s3")
            self(f"s_mul_i32 s100, s100, {rec}")
            self(f"s_add_u32 s100, s100, {PROF['off'] + PROF['kidx'] * 512 * 8 * rec}")
            self("v_mov_b32 v1, 0")
            self("s_waitcnt lgkmcnt(0)")
            self("s_sub_u32 s98, s98, s96")
            for i in range(N):
                self(f"v_mov_b32 v0, s{B+2*i}")
                self(f"buffer_store_dword v0, v1, s[28:31], s100 offen offset:{4*i}")
            self("v_mov_b32 v0, s98")
            self(f"buffer_store_dword v0, v1, s[28:31], s100 offen offset:{4*N}")
            self("s_getreg_b32 s98, hwreg(HW_REG_XCC_ID)")
            self("v_mov_b32 v0, s98")
            self(f"buffer_store_dword v0, v1, s[28:31], s100 offen offset:{4*N+4}")
        self("s_endpgm")

    def __init__(self):
        self.lines = []
        self.vm = []
        self.lg = []

    def __call__(self, s):
        for l in s.split("\n"):
            l = l.strip()
            if l:
                self.lines.append(("" if l.endswith(":") else "  ") + l)

    def label(self, name):
        self.lines.append(name + ":")

    def comment(self, s):
        self.lines.append("  ; " + s)

    def vmem(self, s, tag):
        self(s)
        self.vm.append(tag)

    def lds(self, s, tag):
        self(s)
        self.lg.append(tag)

    def _need(self, q, tags):
        if isinstance(tags, str):
            tags = [tags]
        last = -1
        for i, t in enumerate(q):
            if t in tags:
                last = i
        return last

    def wait(self, vm=None, lg=None):
        parts = []
        if vm is not None:
            if vm == "all":
                last = len(self.vm) - 1
            else:
                last = self._need(self.vm, vm)
            if last >= 0:
                n = len(self.vm) - 1 - last
                assert n <= 63
                parts.append(f"vmcnt({n})")
                self.vm = self.vm[last + 1:]
        if lg is not None:
            if lg == "all":
                last = len(self.lg) - 1
            else:
                last = self._need(self.lg, lg)
            if last >= 0:
                n = len(self.lg) - 1 - last
                n = min(n, 15)
                parts.append(f"lgkmcnt({n})")
                self.lg = self.lg[len(self.lg) - n:] if n else []
        if parts:
            self("s_waitcnt " + " ".join(parts))

    def srd(self, d, lo, hi, size):
        self(f"s_mov_b32 s{d}, s{lo}")
        self(f"s_mov_b32 s{d+1}, s{hi}")
        self(f"s_mov_b32 s{d+2}, {size}")
        self(f"s_mov_b32 s{d+3}, 0x20000")

    def text(self):
        return "\n".join(self.lines) + "\n"


def vr(a, n):
    return f"v[{a}:{a+n-1}]" if n > 1 else f"v{a}"

def ar(a, n):
    return f"a[{a}:{a+n-1}]" if n > 1 else f"a{a}"

def sr(a, n):
    return f"s[{a}:{a+n-1}]" if n > 1 else f"s{a}"

def f32hex(x):
    import struct
    return "0x%08x" % struct.unpack("<I", struct.pack("<f", x))[0]

def kernel_header(name):
    return f".globl {name}\n.p2align 8\n.type {name},@function\n{name}:\n"

def kernel_desc(name, vgpr, sgpr, accum=None):
    if PROF["on"]:
        sgpr = 102
    if accum is None:
        accum = (vgpr + 3) // 4 * 4
    return f""".p2align 6
.amdhsa_kernel {name}
  .amdhsa_next_free_vgpr {vgpr}
  .amdhsa_next_free_sgpr {sgpr}
  .amdhsa_accum_offset {accum}
  .amdhsa_group_segment_fixed_size 0
  .amdhsa_kernarg_size 96
  .amdhsa_user_sgpr_count 2
  .amdhsa_user_sgpr_kernarg_segment_ptr 1
  .amdhsa_system_sgpr_workgroup_id_x 1
.end_amdhsa_kernel
"""


def inst_size(l):
    import re
    l = l.strip()
    if not l or l.endswith(":") or l.startswith(";") or l.startswith("."):
        return 0
    op = l.split()[0]
    if op.startswith(("buffer_", "ds_", "v_mfma", "s_load", "s_mem", "global_", "v_pk_", "v_cvt_pk", "v_perm", "v_fma_", "v_max3",
                      "v_lshl_add", "v_lshl_or", "v_and_or", "v_add3", "v_bfe", "v_mul_lo", "v_mad", "v_readlane", "v_writelane",
                      "v_accvgpr", "v_dot2", "v_lshrrev_b64", "v_min3", "v_med3", "v_alignbit", "v_add_lshl", "v_xad", "v_or3")):
        return 8
    if op.endswith(("_e64", "_dpp", "_sdwa")):
        return 8
    args = l[len(op):]
    lit = False
    for t in re.findall(r"(?<![\w\[:])-?(?:0x[0-9a-fA-F]+|\d+\.\d+|\d+)(?![\w\]:])", args):
        if op.startswith(("s_waitcnt", "s_nop", "s_setprio", "s_sleep", "s_movk", "s_cbranch", "s_branch", "s_getreg")):
            break
        if "." in t and not t.startswith("0x"):
            continue
        v = int(t, 0)
        if not -16 <= v <= 64:
            lit = True
    if op.startswith("v_cmp") and not args.strip().startswith("vcc"):
        return 8
    if op.startswith("v_cndmask") and not re.match(r"\s*v\d+, [^,]+, v\d+, vcc$", args):
        return 8
    return 8 if lit else 4


def align8(lines, start_off=0):
    out = list(lines)
    off = start_off
    last4 = None
    for i, l in enumerate(out):
        n = inst_size(l)
        if n == 8 and off % 8 == 4 and last4 is not None:
            op = out[last4].split()[0]
            out[last4] = out[last4].replace(op, op + "_e64", 1)
            off += 4
        if n == 8:
            last4 = None
        elif n == 4 and l.strip().startswith(("v_exp_f32 ", "v_rcp_f32 ", "v_mul_f32 ", "v_add_f32 ", "v_mov_b32 ")):
            last4 = i
        off += n
    return out
```

```python
from asmlib import *
from layout import *

XN_L = 0
XN_RT = 56 * 528
WQ_L = 2 * XN_RT
WKV_L = WQ_L + 448 * 128
K1_LDS = WKV_L + 25 * 1024
NPREP_WG = 111
K1_GRID = 256 + NPREP_WG + 1


def ln_rows(a, X, Fv, T, eps, extra_scale=None):
    for j in range(28):
        a(f"v_lshlrev_b32 v{Fv+2*j}, 16, v{X+j}")
        a(f"v_and_b32 v{Fv+2*j+1}, 0xffff0000, v{X+j}")
    a(f"v_pk_add_f32 {vr(T,2)}, {vr(Fv,2)}, {vr(Fv+2,2)}")
    a(f"v_pk_add_f32 {vr(T+2,2)}, {vr(Fv+4,2)}, {vr(Fv+6,2)}")
    for j in range(4, 28):
        t = T + 2 * (j % 2)
        a(f"v_pk_add_f32 {vr(t,2)}, {vr(t,2)}, {vr(Fv+2*j,2)}")
    a(f"v_pk_add_f32 {vr(T,2)}, {vr(T,2)}, {vr(T+2,2)}")
    a(f"v_add_f32 v{T}, v{T}, v{T+1}")
    for ctl in ("quad_perm:[1,0,3,2]", "quad_perm:[2,3,0,1]", "row_half_mirror"):
        a("s_nop 1")
        a(f"v_add_f32_dpp v{T}, v{T}, v{T} {ctl} row_mask:0xf bank_mask:0xf")
    a(f"v_mul_f32 v{T+4}, {f32hex(-1.0/448)}, v{T}")
    for j in range(28):
        a(f"v_pk_add_f32 {vr(Fv+2*j,2)}, {vr(Fv+2*j,2)}, {vr(T+4,2)} op_sel_hi:[1,0]")
    a(f"v_pk_mul_f32 {vr(T,2)}, {vr(Fv,2)}, {vr(Fv,2)}")
    a(f"v_pk_mul_f32 {vr(T+2,2)}, {vr(Fv+2,2)}, {vr(Fv+2,2)}")
    for j in range(2, 28):
        t = T + 2 * (j % 2)
        a(f"v_pk_fma_f32 {vr(t,2)}, {vr(Fv+2*j,2)}, {vr(Fv+2*j,2)}, {vr(t,2)}")
    a(f"v_pk_add_f32 {vr(T,2)}, {vr(T,2)}, {vr(T+2,2)}")
    a(f"v_add_f32 v{T}, v{T}, v{T+1}")
    for ctl in ("quad_perm:[1,0,3,2]", "quad_perm:[2,3,0,1]", "row_half_mirror"):
        a("s_nop 1")
        a(f"v_add_f32_dpp v{T}, v{T}, v{T} {ctl} row_mask:0xf bank_mask:0xf")
    a(f"v_mov_b32 v{T+1}, {f32hex(eps)}")
    a(f"v_fmac_f32 v{T+1}, {f32hex(1.0/448)}, v{T}")
    a(f"v_rsq_f32 v{T+4}, v{T+1}")
    a("s_nop 0")
    for j in range(28):
        a(f"v_pk_mul_f32 {vr(Fv+2*j,2)}, {vr(Fv+2*j,2)}, {vr(T+4,2)} op_sel_hi:[1,0]")
        if j >= 1:
            a(f"v_cvt_pk_bf16_f32 v{X+j-1}, v{Fv+2*j-2}, v{Fv+2*j-1}")
    a(f"v_cvt_pk_bf16_f32 v{X+27}, v{Fv+54}, v{Fv+55}")


def proj_tile(a, wstep, whalf, swap, ACC, VW, VX, FR):
    DEPTH = 4
    def issue(ks):
        b = FR + 8 * (ks % DEPTH)
        a.lds(f"ds_read_b64_tr_b16 {vr(b,2)}, v{VW} offset:{ks*wstep}", f"f{ks}")
        a.lds(f"ds_read_b64_tr_b16 {vr(b+2,2)}, v{VW} offset:{ks*wstep+whalf}", f"f{ks}")
        a.lds(f"ds_read_b128 {vr(b+4,4)}, v{VX} offset:{ks*1056}", f"f{ks}")
    for ks in range(DEPTH):
        issue(ks)
    for ks in range(28):
        b = FR + 8 * (ks % DEPTH)
        a.wait(lg=f"f{ks}")
        c = "0" if ks == 0 else vr(ACC, 16)
        if swap:
            a(f"v_mfma_f32_32x32x16_bf16 {vr(ACC,16)}, {vr(b+4,4)}, {vr(b,4)}, {c}")
        else:
            a(f"v_mfma_f32_32x32x16_bf16 {vr(ACC,16)}, {vr(b,4)}, {vr(b+4,4)}, {c}")
        if ks + DEPTH < 28:
            issue(ks + DEPTH)
    a("s_nop 15")


def norm2_allhalves(a, ACC, T):
    a(f"v_pk_mul_f32 {vr(T,2)}, {vr(ACC,2)}, {vr(ACC,2)}")
    for j in range(1, 8):
        a(f"v_pk_fma_f32 {vr(T,2)}, {vr(ACC+2*j,2)}, {vr(ACC+2*j,2)}, {vr(T,2)}")
    a(f"v_add_f32 v{T}, v{T}, v{T+1}")
    a(f"v_mov_b32 v{T+1}, v{T}")
    a("s_nop 1")
    a(f"v_permlane32_swap_b32 v{T}, v{T+1}")
    a("s_nop 1")
    a(f"v_add_f32 v{T}, v{T}, v{T+1}")


def gen_k1(name):
    a = Asm()
    a(f"s_cmp_ge_u32 s2, {K1_GRID}")
    a(f"s_cbranch_scc1 L_{name}_end")
    a.stamp(0)
    a("s_load_dwordx4 s[4:7], s[0:1], 0")
    a("s_load_dwordx4 s[8:11], s[0:1], 16")
    a("s_load_dwordx2 s[12:13], s[0:1], 32")
    a("s_load_dwordx4 s[40:43], s[0:1], 48")
    a("s_load_dwordx2 s[44:45], s[0:1], 64")
    a("s_load_dwordx2 s[14:15], s[0:1], 88")
    a("v_lshrrev_b32 v2, 6, v0")
    a("v_and_b32 v1, 63, v0")
    a("v_readfirstlane_b32 s3, v2")
    a("s_cmp_ge_u32 s2, 256")
    a(f"s_cbranch_scc1 L_{name}_prep")
    a("s_and_b32 s32, s2, 31")
    a("s_lshr_b32 s33, s2, 5")
    a("v_lshrrev_b32 v3, 3, v1")
    a("v_and_b32 v4, 7, v1")
    a("s_lshl_b32 s34, s3, 3")
    a("v_add_u32 v5, s34, v3")
    a("v_mul_u32_u24 v5, 896, v5")
    a("v_lshl_add_u32 v5, v4, 4, v5")
    a("s_mul_i32 s35, s32, 57344")
    a("v_lshrrev_b32 v6, 4, v1")
    a("v_and_b32 v6, 1, v6")
    a("v_lshl_add_u32 v6, v6, 2, v4")
    a("v_and_b32 v6, 7, v6")
    a("v_mul_u32_u24 v7, 896, v3")
    a("v_lshl_add_u32 v6, v6, 4, v7")
    a("v_lshlrev_b32 v7, 4, v1")
    a("s_waitcnt lgkmcnt(0)")
    a.stamp(1)
    a.srd(16, 4, 5, X_BYTES)
    a.srd(20, 6, 7, WQ_BYTES)
    a("s_cmp_lt_u32 s33, 2")
    a("s_cselect_b32 s24, s8, s10")
    a("s_cselect_b32 s25, s9, s11")
    a(f"s_mov_b32 s26, {WKV_BYTES}")
    a("s_mov_b32 s27, 0x20000")
    a.srd(28, 14, 15, WS_SIZE)
    X, Fv, T = 8, 40, 96
    for i in range(7):
        a.vmem(f"buffer_load_dwordx4 {vr(X+4*i,4)}, v5, s[16:19], s35 offen offset:{128*i}", "x")
    a("s_mul_i32 s36, s3, 7")
    a("s_mul_i32 s37, s36, 7168")
    a("s_mul_i32 s38, s33, 112")
    a("s_add_u32 s37, s37, s38")
    a("s_lshl_b32 s38, s36, 10")
    a(f"s_add_u32 s38, s38, {WQ_L}")
    for i in range(7):
        a("s_mov_b32 m0, s38")
        a("s_add_u32 s38, s38, 1024")
        a.vmem("buffer_load_dwordx4 v6, s[20:23], s37 offen lds", "w")
        a("s_add_u32 s37, s37, 7168")
    a("s_cmp_ge_u32 s33, 4")
    a(f"s_cbranch_scc1 L_{name}_nokv")
    a("s_lshl_b32 s37, s3, 10")
    a(f"s_add_u32 s38, s37, {WKV_L}")
    for i in range(3):
        a("s_mov_b32 m0, s38")
        a("s_add_u32 s38, s38, 8192")
        a("buffer_load_dwordx4 v7, s[24:27], s37 offen lds")
        a("s_add_u32 s37, s37, 8192")
    a("s_cmp_lg_u32 s3, 0")
    a(f"s_cbranch_scc1 L_{name}_nokv")
    a("s_mov_b32 m0, s38")
    a("s_nop 0")
    a("buffer_load_dwordx4 v7, s[24:27], s37 offen lds")
    a.label(f"L_{name}_nokv")
    a("s_lshr_b32 s36, s3, 2")
    a(f"s_mul_i32 s36, s36, {XN_RT}")
    a("s_and_b32 s37, s3, 3")
    a("s_lshl_b32 s37, s37, 7")
    a("s_add_u32 s36, s36, s37")
    a("v_mul_u32_u24 v104, 528, v4")
    a("v_lshl_add_u32 v104, v3, 4, v104")
    a("v_add_u32 v104, s36, v104")
    a("s_waitcnt vmcnt(7)")
    a.vm = []
    a.stamp(2)
    ln_rows(a, X, Fv, T, EPS)
    a.stamp(3)
    for i in range(7):
        a(f"ds_write_b128 v104, {vr(X+4*i,4)} offset:{4224*i}")
    a("s_waitcnt vmcnt(0) lgkmcnt(0)")
    a.stamp(4)
    a("s_barrier")
    a.stamp(5)
    a("s_cmp_gt_u32 s3, 4")
    a(f"s_cbranch_scc1 L_{name}_end2")
    ACC, VW, VX, FR = 8, 105, 106, 40
    a("v_lshrrev_b32 v2, 4, v1")
    a("v_and_b32 v3, 15, v1")
    a("v_lshrrev_b32 v4, 2, v3")
    a("v_and_b32 v3, 3, v3")
    a("v_lshrrev_b32 v5, 1, v2")
    a("v_lshl_add_u32 v4, v5, 3, v4")
    a("v_and_b32 v2, 1, v2")
    a("v_lshlrev_b32 v2, 5, v2")
    a("v_lshl_add_u32 v2, v3, 3, v2")
    a("v_and_b32 v3, 31, v1")
    a("v_lshrrev_b32 v5, 5, v1")
    a(f"v_mul_u32_u24 v{VX}, 528, v5")
    a(f"v_lshl_add_u32 v{VX}, v3, 4, v{VX}")
    a("v_cmp_lt_u32 vcc, 31, v1")
    a("s_cmp_eq_u32 s3, 4")
    a(f"s_cbranch_scc1 L_{name}_kv")
    a("s_lshr_b32 s36, s3, 1")
    a("s_and_b32 s37, s3, 1")
    a(f"s_mul_i32 s38, s36, {XN_RT}")
    a(f"v_add_u32 v{VX}, s38, v{VX}")
    a("s_mul_i32 s38, s37, 56")
    a("v_add_u32 v2, s38, v2")
    a("v_lshrrev_b32 v6, 1, v4")
    a("v_and_b32 v6, 1, v6")
    a("v_lshl_add_u32 v2, v6, 6, v2")
    a("v_and_b32 v2, 127, v2")
    a(f"v_lshl_add_u32 v{VW}, v4, 7, v2")
    a(f"v_add_u32 v{VW}, {WQ_L}, v{VW}")
    proj_tile(a, 2048, 512, False, ACC, VW, VX, FR)
    a.stamp(6)
    a(f"s_mov_b32 s38, {f32hex(QSCALE)}")
    for j in range(16):
        a(f"v_mul_f32 v{ACC+j}, s38, v{ACC+j}")
    for j in range(12, 16):
        a(f"v_cndmask_b32 v{ACC+j}, v{ACC+j}, 0, vcc")
    norm2_allhalves(a, ACC, T)
    a(f"v_sqrt_f32 v{T}, v{T}")
    a("s_nop 0")
    a(f"v_cndmask_b32 v{ACC+12}, v{ACC+12}, v{T}, vcc")
    for u in range(8):
        a(f"v_cvt_pk_bf16_f32 v{FR+u}, v{ACC+2*u}, v{ACC+2*u+1}")
    a("s_lshl_b32 s38, s33, 1")
    a("s_add_u32 s38, s38, s37")
    a("s_lshl_b32 s39, s32, 3")
    a("s_lshl_b32 s36, s36, 2")
    a("s_add_u32 s39, s39, s36")
    a("s_lshl_b32 s39, s39, 13")
    a("s_lshr_b32 s36, s38, 2")
    a("s_lshl_b32 s36, s36, 11")
    a("s_add_u32 s39, s39, s36")
    a("s_and_b32 s36, s38, 3")
    a("s_lshl_b32 s36, s36, 7")
    a("s_add_u32 s39, s39, s36")
    a(f"s_add_u32 s39, s39, {QF_OFF}")
    a("v_lshrrev_b32 v6, 3, v3")
    a("v_lshlrev_b32 v6, 13, v6")
    a("v_and_b32 v7, 7, v3")
    a("v_lshl_add_u32 v6, v7, 4, v6")
    a("v_lshl_add_u32 v6, v5, 9, v6")
    a(f"buffer_store_dwordx4 {vr(FR,4)}, v6, s[28:31], s39 offen")
    a(f"buffer_store_dwordx4 {vr(FR+4,4)}, v6, s[28:31], s39 offen offset:1024")
    a.label(f"L_{name}_end2")
    a.end()
    a.label(f"L_{name}_kv")
    a("s_cmp_ge_u32 s33, 4")
    a(f"s_cbranch_scc1 L_{name}_end2")
    a("s_and_b32 s36, s33, 1")
    a(f"s_mul_i32 s38, s36, {XN_RT}")
    a(f"v_add_u32 v{VX}, s38, v{VX}")
    a(f"v_mul_u32_u24 v{VW}, 56, v4")
    a(f"v_add_u32 v{VW}, v{VW}, v2")
    a(f"v_add_u32 v{VW}, {WKV_L}, v{VW}")
    a("s_lshl_b32 s39, s32, 1")
    a("s_add_u32 s39, s39, s36")
    a("s_lshl_b32 s37, s39, 2")
    a(f"s_add_u32 s37, s37, {KN_OFF}")
    a("s_lshl_b32 s39, s39, 12")
    a(f"s_add_u32 s39, s39, {KVF_OFF}")
    a("v_lshlrev_b32 v7, 4, v1")
    a("s_cmp_ge_u32 s33, 2")
    a(f"s_cbranch_scc1 L_{name}_v")
    proj_tile(a, 896, 224, False, ACC, VW, VX, FR)
    for j in range(12, 16):
        a(f"v_cndmask_b32 v{ACC+j}, v{ACC+j}, 0, vcc")
    norm2_allhalves(a, ACC, T)
    a(f"v_cndmask_b32 v{ACC+12}, v{ACC+12}, 1.0, vcc")
    for u in range(8):
        a(f"v_cvt_pk_bf16_f32 v{FR+u}, v{ACC+2*u}, v{ACC+2*u+1}")
    a(f"buffer_store_dwordx4 {vr(FR,4)}, v7, s[28:31], s39 offen")
    a(f"buffer_store_dwordx4 {vr(FR+4,4)}, v7, s[28:31], s39 offen offset:1024")
    for ctl in ("quad_perm:[1,0,3,2]", "quad_perm:[2,3,0,1]", "row_half_mirror", "row_mirror"):
        a("s_nop 1")
        a(f"v_max_f32_dpp v{T}, v{T}, v{T} {ctl} row_mask:0xf bank_mask:0xf")
    a("s_nop 1")
    a(f"v_readlane_b32 s36, v{T}, 0")
    a(f"v_readlane_b32 s38, v{T}, 16")
    a("s_max_u32 s36, s36, s38")
    a(f"v_mov_b32 v{T}, s36")
    a("v_mov_b32 v6, 0")
    a("s_mov_b64 exec, 1")
    a(f"buffer_store_dword v{T}, v6, s[28:31], s37 offen")
    a.end()
    a.label(f"L_{name}_v")
    proj_tile(a, 896, 224, True, ACC, VW, VX, FR)
    for u in range(8):
        a(f"v_cvt_pk_bf16_f32 v{FR+u}, v{ACC+2*u}, v{ACC+2*u+1}")
    a("v_cmp_eq_u32 vcc, 28, v3")
    a("v_mov_b32 v6, 0x3f803f80")
    a("s_nop 0")
    a("v_cndmask_b32 v6, 0, v6, vcc")
    a("v_cmp_gt_u32 vcc, 28, v3")
    a("s_nop 1")
    for u in range(8):
        a(f"v_cndmask_b32 v{FR+u}, v6, v{FR+u}, vcc")
    a(f"buffer_store_dwordx4 {vr(FR,4)}, v7, s[28:31], s39 offen offset:2048")
    a(f"buffer_store_dwordx4 {vr(FR+4,4)}, v7, s[28:31], s39 offen offset:3072")
    a.end()

    a.label(f"L_{name}_prep")
    a("s_sub_u32 s32, s2, 256")
    a("s_lshl_b32 s32, s32, 3")
    a("s_add_u32 s32, s32, s3")
    a("v_and_b32 v2, 15, v1")
    a("v_lshrrev_b32 v3, 4, v1")
    a("s_waitcnt lgkmcnt(0)")
    a.srd(28, 14, 15, WS_SIZE)
    a(f"s_cmp_eq_u32 s2, {K1_GRID-1}")
    a(f"s_cbranch_scc1 L_{name}_bias")
    a("s_cmp_ge_u32 s32, 882")
    a(f"s_cbranch_scc1 L_{name}_end")
    a("s_cmp_ge_u32 s32, 784")
    a(f"s_cbranch_scc1 L_{name}_pwo")
    a("s_cmp_ge_u32 s32, 392")
    a(f"s_cbranch_scc1 L_{name}_pw2")
    a.srd(16, 40, 41, W1_BYTES)
    a("s_mul_i32 s33, s32, 2341")
    a("s_lshr_b32 s33, s33, 16")
    a("s_mul_i32 s34, s33, 28")
    a("s_sub_u32 s34, s32, s34")
    a(f"s_mul_i32 s20, s33, {32*3584}")
    a("s_lshl_b32 s35, s34, 7")
    a("s_add_u32 s20, s20, s35")
    a("s_movk_i32 s36, 3584")
    a(f"v_mul_u32_u24 v4, {8*3584}, v3")
    a("v_lshl_add_u32 v4, v2, 3, v4")
    a(f"v_add_u32 v5, {4*3584}, v4")
    for c in range(4):
        a(f"s_lshl_b32 s35, s34, 2")
        a(f"s_add_u32 s35, s35, {c}")
        a("s_mul_i32 s37, s35, 147")
        a("s_lshr_b32 s37, s37, 10")
        a("s_mul_i32 s38, s37, 7")
        a("s_sub_u32 s38, s35, s38")
        a("s_mul_i32 s39, s33, 7")
        a("s_add_u32 s38, s38, s39")
        a("s_lshl_b32 s38, s38, 10")
        a("s_mul_i32 s37, s37, 100352")
        a("s_add_u32 s38, s38, s37")
        a(f"s_add_u32 s{24+c}, s38, {W1F_OFF}")
    a(f"s_branch L_{name}_pgo")
    a.label(f"L_{name}_pw2")
    a.srd(16, 44, 45, W1_BYTES)
    a("s_sub_u32 s32, s32, 392")
    a("s_mul_i32 s33, s32, 9363")
    a("s_lshr_b32 s33, s33, 16")
    a("s_mul_i32 s34, s33, 7")
    a("s_sub_u32 s34, s32, s34")
    a("s_mul_i32 s35, s33, 147")
    a("s_lshr_b32 s35, s35, 10")
    a("s_mul_i32 s36, s35, 7")
    a("s_sub_u32 s36, s33, s36")
    a("s_mul_i32 s35, s35, 14")
    a("s_lshl_b32 s37, s36, 1")
    a("s_add_u32 s37, s37, s35")
    a("s_cmp_ge_u32 s36, 3")
    a("s_addc_u32 s37, s37, 0")
    a("s_add_u32 s38, s37, 1")
    a("s_add_u32 s39, s35, 6")
    a("s_add_u32 s35, s35, 13")
    a("s_cmp_eq_u32 s36, 6")
    a("s_cselect_b32 s37, s39, s37")
    a("s_cselect_b32 s38, s35, s38")
    for r in (37, 38):
        a(f"s_lshr_b32 s35, s{r}, 2")
        a("s_lshl_b32 s35, s35, 6")
        a(f"s_and_b32 s{r}, s{r}, 3")
        a(f"s_add_u32 s{r}, s{r}, s35")
        a(f"s_mul_i32 s{r}, s{r}, 896")
    a(f"v_mul_u32_u24 v4, {16*896}, v3")
    a("v_lshl_add_u32 v4, v2, 3, v4")
    a("v_add_u32 v5, s38, v4")
    a("v_add_u32 v4, s37, v4")
    a("s_lshl_b32 s20, s34, 7")
    a("s_movk_i32 s36, 3584")
    a("s_mul_i32 s35, s34, 56")
    a("s_add_u32 s35, s35, s33")
    a("s_lshl_b32 s35, s35, 12")
    for c in range(4):
        a(f"s_add_u32 s{24+c}, s35, {W2F_OFF + 1024*c}")
    a(f"s_branch L_{name}_pgo")
    a.label(f"L_{name}_pwo")
    a.srd(16, 12, 13, WQ_BYTES)
    a("s_sub_u32 s32, s32, 784")
    a("s_mul_i32 s33, s32, 147")
    a("s_lshr_b32 s33, s33, 10")
    a("s_mul_i32 s34, s33, 7")
    a("s_sub_u32 s34, s32, s34")
    a("s_lshl_b32 s35, s33, 2")
    a("v_add_u32 v6, s35, v3")
    a("v_mul_u32_u24 v7, 147, v6")
    a("v_lshrrev_b32 v7, 10, v7")
    a("v_mul_u32_u24 v8, 7, v7")
    a("v_sub_u32 v6, v6, v8")
    offA = [0, 16, 4, 28, 44, 32, 20]
    tab = sum(o << (8 * i) for i, o in enumerate(offA))
    a(f"s_mov_b32 s36, {tab & 0xffffffff:#x}")
    a(f"s_mov_b32 s37, {tab >> 32:#x}")
    a("v_lshlrev_b32 v8, 3, v6")
    a("v_lshrrev_b64 v[10:11], v8, s[36:37]")
    a("v_and_b32 v10, 0xff, v10")
    a("v_mul_u32_u24 v7, 56, v7")
    a("v_add_u32 v10, v10, v7")
    a("v_cmp_eq_u32 vcc, 6, v6")
    a("v_mov_b32 v8, 28")
    a("v_mul_u32_u24 v4, 896, v10")
    a("v_cndmask_b32 v8, 8, v8, vcc")
    a("v_lshl_add_u32 v4, v2, 3, v4")
    a("v_mul_u32_u24 v8, 896, v8")
    a("v_add_u32 v5, v4, v8")
    a("s_lshl_b32 s20, s34, 7")
    a("s_cmp_ge_u32 s33, 7")
    a("s_cselect_b32 s38, 1, 0")
    a("s_mul_i32 s39, s38, 7")
    a("s_sub_u32 s39, s33, s39")
    a("s_mul_i32 s39, s39, 7")
    for c in range(4):
        a("s_lshl_b32 s35, s34, 2")
        a(f"s_add_u32 s35, s35, {c}")
        a("s_mul_i32 s36, s35, 147")
        a("s_lshr_b32 s36, s36, 10")
        a("s_mul_i32 s37, s36, 7")
        a("s_sub_u32 s35, s35, s37")
        a("s_lshl_b32 s36, s36, 1")
        a("s_add_u32 s36, s36, s38")
        a("s_mul_i32 s36, s36, 49")
        a("s_add_u32 s36, s36, s39")
        a("s_add_u32 s36, s36, s35")
        a("s_lshl_b32 s36, s36, 10")
        a(f"s_add_u32 s{24+c}, s36, {WOF_OFF}")
    a("s_movk_i32 s36, 896")
    a.label(f"L_{name}_pgo")
    a("s_add_u32 s21, s20, s36")
    a("s_add_u32 s22, s21, s36")
    a("s_add_u32 s23, s22, s36")
    R, O = 8, 24
    for t in range(8):
        a(f"buffer_load_dwordx2 {vr(R+2*t,2)}, v{4 + t//4}, s[16:19], s{20 + t%4} offen")
    a("s_mov_b32 s36, 0x05040100")
    a("s_mov_b32 s37, 0x07060302")
    a("v_lshlrev_b32 v7, 4, v1")
    a.stamp(1)
    a("s_waitcnt vmcnt(0)")
    a.stamp(2)
    for c in range(4):
        for u in range(4):
            a(f"v_perm_b32 v{O+4*c+u}, v{R+2*(2*u+1)+c//2}, v{R+2*(2*u)+c//2}, s{36 + c%2}")
        a(f"buffer_store_dwordx4 {vr(O+4*c,4)}, v7, s[28:31], s{24+c} offen")
    a.end()
    a.label(f"L_{name}_bias")
    a.srd(16, 42, 43, B1_BYTES)
    a(f"s_mov_b32 s36, {f32hex(LOG2E)}")
    a(f"s_mov_b32 s37, {B1F_OFF}")
    for j in range(4):
        a(f"v_add_u32 v4, {512*j}, v0")
        a("v_lshrrev_b32 v5, 6, v4")
        a("v_lshlrev_b32 v5, 6, v5")
        a("v_and_b32 v6, 15, v4")
        a("v_lshl_add_u32 v5, v6, 2, v5")
        a("v_bfe_u32 v6, v4, 4, 2")
        a("v_add_u32 v5, v5, v6")
        a("v_lshlrev_b32 v5, 1, v5")
        a(f"buffer_load_ushort v{8+j}, v5, s[16:19], 0 offen")
    a("s_waitcnt vmcnt(0)")
    for j in range(4):
        a(f"v_lshlrev_b32 v{8+j}, 16, v{8+j}")
        a(f"v_mul_f32 v{8+j}, s36, v{8+j}")
        a(f"v_lshlrev_b32 v4, 2, v0")
        a(f"buffer_store_dword v{8+j}, v4, s[28:31], s37 offen offset:{2048*j if j < 2 else 0}" if j < 2 else
          f"buffer_store_dword v{8+j}, v4, s[28:31], s38 offen offset:{2048*(j-2)}")
        if j == 1:
            a("s_add_u32 s38, s37, 4096")
    a.label(f"L_{name}_end")
    a("s_endpgm")
    return a.text(), kernel_desc(name, 112, 64)
```

```python
from asmlib import *
from layout import *

import os
OPT = set(os.environ.get("K2OPT", "").split(","))
RING = 0
OB_L = 131072
TRASH_L = OB_L + 14336
LX_L = 147456
K2_LDS = LX_L + 2048
RED_L = 0
RED_ROW = 452 * 4
RED_PART = 8 * RED_ROW

Q, O, SB, P, KF, VF = 8, 16, 32, 64, 72, 88
XR = 4
VL16, VKV0, VKV1, MRUN = 112, 113, 114, 115
T0 = 116
WPRE, NPRE = 120, 34
WLATE = 36
ACC2, BF = 8, 96


def wave_allreduce(a, op, v, t):
    for ctl in ("quad_perm:[1,0,3,2]", "quad_perm:[2,3,0,1]", "row_half_mirror", "row_mirror"):
        a("s_nop 1")
        a(f"{op}_dpp v{v}, v{v}, v{v} {ctl} row_mask:0xf bank_mask:0xf")
    for sw in ("v_permlane16_swap_b32", "v_permlane32_swap_b32"):
        a(f"v_mov_b32 v{t}, v{v}")
        a("s_nop 1")
        a(f"{sw} v{v}, v{t}")
        a("s_nop 1")
        a(f"{op} v{v}, v{v}, v{t}")


def wreg(f):
    return WPRE + 4 * f if f < NPRE else WLATE + 4 * (f - NPRE)


def gen_k2(name):
    a = Asm()
    a("s_cmp_ge_u32 s2, 256")
    a(f"s_cbranch_scc1 L_{name}_end")
    a.stamp(0)
    a("s_load_dwordx2 s[4:5], s[0:1], 0")
    a("s_load_dwordx2 s[14:15], s[0:1], 88")
    a("v_lshrrev_b32 v2, 6, v0")
    a("v_and_b32 v1, 63, v0")
    a("v_readfirstlane_b32 s3, v2")
    a(f"v_lshlrev_b32 v{VL16}, 4, v1")
    a("s_and_b32 s32, s3, 3")
    a("s_lshr_b32 s33, s3, 2")
    a("s_lshl_b32 s34, s33, 14")
    a(f"v_add_u32 v{VKV0}, s34, v{VL16}")
    a(f"v_add_u32 v{VKV1}, 0x10000, v{VKV0}")
    a("s_lshl_b32 s40, s33, 5")
    a("s_add_u32 s40, s40, s32")
    a("s_lshl_b32 s40, s40, 12")
    a(f"s_add_u32 s40, s40, {KVF_OFF}")
    a("s_lshl_b32 s41, s3, 12")
    a("s_lshl_b32 s35, s2, 13")
    a("s_lshl_b32 s36, s32, 11")
    a("s_add_u32 s35, s35, s36")
    a(f"s_mov_b32 s36, {KN_OFF}")
    a("s_mul_i32 s42, s3, 50176")
    a(f"s_add_u32 s42, s42, {WOF_OFF}")
    a("s_lshl_b32 s43, s2, 3")
    a("s_add_u32 s43, s43, s3")
    a("s_mul_i32 s44, s43, 896")
    a("v_lshlrev_b32 v2, 2, v1")
    a("s_waitcnt lgkmcnt(0)")
    a.stamp(1)
    a.srd(28, 14, 15, WS_SIZE)
    a.srd(16, 4, 5, X_BYTES)

    def dma(c):
        a(f"s_add_u32 m0, s41, {(c % 4) * 32768}")
        a("s_nop 0")
        for f in range(4):
            a.vmem(f"buffer_load_dwordx4 v{VL16}, s[28:31], s40 offen offset:{1024*f} {'sc1 ' if 'sc1' in OPT else ''}lds", f"kv{c}")
        a("s_add_u32 s40, s40, 16384")

    def wload(f):
        if f % 4 == 0 and f > 0:
            a("s_add_u32 s42, s42, 4096")
        a.vmem(f"buffer_load_dwordx4 {vr(wreg(f),4)}, v{VL16}, s[28:31], s42 offen offset:{1024*(f%4)}", f"w{f}")

    a.vmem(f"buffer_load_dword v{T0}, v2, s[28:31], s36 offen", "kn")
    a.vmem(f"buffer_load_dwordx4 {vr(Q,4)}, v{VL16}, s[28:31], s35 offen", "q")
    a.vmem(f"buffer_load_dwordx4 {vr(Q+4,4)}, v{VL16}, s[28:31], s35 offen offset:1024", "q")
    dma(0)
    dma(1)
    dma(2)
    a.vmem(f"buffer_load_dwordx4 {vr(XR,4)}, v{VL16}, s[16:19], s44 offen", "x")
    for r in range(16):
        a(f"v_mov_b32 v{O+r}, 0")
    a(f"v_mov_b32 v{MRUN}, 0")
    a.wait(vm="kn")
    wave_allreduce(a, "v_max_f32", T0, T0 + 1)
    a(f"v_sqrt_f32 v{T0}, v{T0}")
    a.wait(vm="q")
    a(f"v_mul_f32 v{T0}, {f32hex(-1.02)}, v{T0}")
    a(f"v_lshlrev_b32 v{T0+1}, 16, v{Q+6}")
    a(f"v_mul_f32 v{T0}, v{T0}, v{T0+1}")
    a(f"v_mov_b32 v{T0+2}, {f32hex(-M_LIMIT)}")
    a(f"v_cmp_nge_f32 s[46:47], v{T0}, v{T0+2}")
    a("v_cmp_lt_u32 vcc, 31, v1")
    a(f"v_lshrrev_b32 v{T0}, 16, v{T0}")
    a("s_cmp_lg_u32 s47, 0")
    a(f"s_cbranch_scc1 L_{name}_slow")
    a(f"v_cndmask_b32 v{Q+6}, v{Q+6}, v{T0}, vcc")

    vm_at_split = list(a.vm)

    def kvaddr(i, frag):
        c, t = divmod(i, 4)
        slot = c % 4
        base = VKV0 if slot < 2 else VKV1
        return f"v{base} offset:{(slot % 2) * 32768 + t * 4096 + frag * 1024}"

    def readK(i):
        if "nolds" in OPT and i > 1:
            return
        b = KF + 8 * (i % 2)
        a.lds(f"ds_read_b128 {vr(b,4)}, {kvaddr(i,0)}", f"k{i}")
        a.lds(f"ds_read_b128 {vr(b+4,4)}, {kvaddr(i,1)}", f"k{i}")

    def readV(i):
        if "nolds" in OPT and i > 1:
            return
        b = VF + 8 * (i % 2)
        a.lds(f"ds_read_b128 {vr(b,4)}, {kvaddr(i,2)}", f"v{i}")
        a.lds(f"ds_read_b128 {vr(b+4,4)}, {kvaddr(i,3)}", f"v{i}")

    def qk(i, m):
        if "nomfma" in OPT and i > 1:
            return
        s = SB + 16 * (i % 2)
        k = KF + 8 * (i % 2) + 4 * m
        c = "0" if m == 0 else vr(s, 16)
        a(f"v_mfma_f32_32x32x16_bf16 {vr(s,16)}, {vr(k,4)}, {vr(Q+4*m,4)}, {c}")

    def pv(i, m):
        if "nomfma" in OPT and i > 1:
            return
        v = VF + 8 * (i % 2) + 4 * m
        a(f"v_mfma_f32_32x32x16_bf16 {vr(O,16)}, {vr(v,4)}, {vr(P+4*m,4)}, {vr(O,16)}")

    def ex(i, r):
        s = SB + 16 * (i % 2) + r
        a(f"v_exp_f32 v{s}, v{s}")

    def cv(i, u):
        s = SB + 16 * (i % 2) + 2 * u
        a(f"v_cvt_pk_bf16_f32 v{P+u}, v{s}, v{s+1}")

    a.stamp(2)
    a.wait(vm="kv0")
    a.stamp(3)
    a("s_barrier")
    a.stamp(4)
    a.cstamp(7)
    readK(0)
    readK(1)
    readV(0)
    a.wait(lg="k0")
    qk(0, 0)
    qk(0, 1)
    a("s_nop 7")
    a("s_nop 3")
    if "prio" in OPT:
        a("s_cmp_lt_u32 s3, 4")
        a(f"s_cbranch_scc1 L_{name}_np")
        a("s_setprio 1")
        a.label(f"L_{name}_np")
    wq = list(range(NPRE))
    NT = 32
    for i in range(NT):
        c = i // 4
        if i == 16:
            a.stamp(5)
            a.cstamp(8)
        if i % 4 == 2 and c + 1 <= 7:
            a.wait(vm=f"kv{c+1}")
            if "nobar" not in OPT:
                a("s_barrier")
            if c + 3 <= 7:
                dma(c + 3)
        if "prio4" in OPT:
            a(f"s_setprio {3 - (i + 2) % 4}")
        if "prio2" in OPT and i % 2 == 0:
            a(f"s_setprio {1 - ((i + 2) % 4) // 2}")
        if i + 1 < NT:
            a.wait(lg=f"k{i+1}")
            qk(i + 1, 0)
        ex(i, 0)
        if i + 2 < NT:
            readK(i + 2)
        for r in range(1, 5):
            ex(i, r)
        if i > 0:
            pv(i - 1, 1)
        ex(i, 5)
        if i + 1 < NT:
            readV(i + 1)
        ex(i, 6)
        ex(i, 7)
        for u in range(4):
            cv(i, u)
        if i + 1 < NT:
            qk(i + 1, 1)
        ex(i, 8)
        if i >= 2 and wq and "nowo" not in OPT:
            wload(wq.pop(0))
            if i % 4 == 0 and wq:
                wload(wq.pop(0))
        for r in range(9, 13):
            ex(i, r)
        a.wait(lg=f"v{i}")
        pv(i, 0)
        for r in range(13, 16):
            ex(i, r)
        for u in range(4, 8):
            cv(i, u)
    while wq:
        wload(wq.pop(0))
    a("s_nop 1")
    pv(NT - 1, 1)
    a.label(f"L_{name}_join")
    a.stamp(6)
    a.cstamp(9)
    for f in range(NPRE, 49):
        wload(f)
    a("s_nop 7")
    a(f"v_mov_b32 v{T0}, v{O+12}")
    a(f"v_mov_b32 v{T0+1}, v{O+12}")
    a("v_and_b32 v2, 31, v1")
    a("s_lshl_b32 s34, s3, 8")
    a(f"s_add_u32 s34, s34, {LX_L}")
    a(f"v_permlane32_swap_b32 v{T0}, v{T0+1}")
    a("v_lshl_add_u32 v3, v2, 3, s34")
    a(f"v_mov_b32 v{T0}, v{MRUN}")
    a(f"ds_write_b64 v3, {vr(T0,2)}")
    a("v_xor_b32 v3, 1024, v3")
    a("s_waitcnt lgkmcnt(0)")
    a("s_barrier")
    a(f"ds_read_b64 {vr(T0+2,2)}, v3")
    a("v_lshrrev_b32 v3, 3, v2")
    a("s_lshl_b32 s34, s32, 1")
    a(f"v_lshrrev_b32 v{VKV0}, 1, v3")
    a(f"v_add_u32 v{VKV0}, s34, v{VKV0}")
    a(f"v_mul_u32_u24 v{VKV0}, 7, v{VKV0}")
    a("v_and_b32 v3, 1, v3")
    a("v_and_b32 v2, 7, v2")
    a("s_lshl_b32 s34, s33, 7")
    a(f"s_add_u32 s34, s34, {OB_L}")
    a("v_lshl_add_u32 v2, v2, 4, s34")
    a(f"v_lshl_add_u32 v2, v{VKV0}, 8, v2")
    a(f"v_mul_u32_u24 v{VKV0}, 768, v3")
    a(f"v_add_u32 v{VKV0}, v{VKV0}, v2")
    a(f"v_lshl_add_u32 v2, v3, 3, v2")
    a(f"v_add_u32 v2, {6*256}, v2")
    a("v_cmp_lt_u32 vcc, 31, v1")
    a(f"v_add_u32 v3, 256, v{VKV0}")
    a(f"v_add_u32 v{VKV1}, 512, v{VKV0}")
    a(f"v_cndmask_b32 v{VKV0}, v{VKV0}, v{VKV1}, vcc")
    a("v_cndmask_b32 v2, v3, v2, vcc")
    a("v_add_u32 v3, 8, v3")
    a(f"v_add_u32 v{VKV1}, {TRASH_L}, v{VL16}")
    a(f"v_cndmask_b32 v3, v3, v{VKV1}, vcc")
    a("s_waitcnt lgkmcnt(0)")
    a(f"v_max_f32 v{MRUN}, v{T0}, v{T0+2}")
    a(f"v_sub_f32 v{T0}, v{T0}, v{MRUN}")
    a(f"v_sub_f32 v{T0+2}, v{T0+2}, v{MRUN}")
    a(f"v_exp_f32 v{T0}, v{T0}")
    a(f"v_exp_f32 v{T0+2}, v{T0+2}")
    a(f"v_mul_f32 v{T0+1}, v{T0+1}, v{T0}")
    a(f"v_fmac_f32 v{T0+1}, v{T0+3}, v{T0+2}")
    a(f"v_rcp_f32 v{T0+1}, v{T0+1}")
    a("s_nop 0")
    a(f"v_mul_f32 v{T0}, v{T0}, v{T0+1}")
    for j in range(8):
        a(f"v_pk_mul_f32 {vr(O+2*j,2)}, {vr(O+2*j,2)}, {vr(T0,2)} op_sel_hi:[1,0]")
    for u in range(8):
        a(f"v_cvt_pk_bf16_f32 v{Q+u}, v{O+2*u}, v{O+2*u+1}")
    a(f"ds_write_b128 v{VKV0}, {vr(Q,4)}")
    a(f"ds_write_b64 v2, {vr(Q+4,2)}")
    a(f"ds_write_b64 v3, {vr(Q+6,2)}")
    a("s_and_b32 s34, s3, 1")
    a("s_mul_i32 s35, s34, 7168")
    a(f"s_add_u32 s35, s35, {OB_L}")
    a(f"v_add_u32 v2, s35, v{VL16}")
    a("s_waitcnt lgkmcnt(0)")
    a("s_barrier")
    a.lg = []
    def readB(ks):
        a.lds(f"ds_read_b128 {vr(BF+4*(ks%4),4)}, v2 offset:{1024*ks}", f"b{ks}")
    for ks in range(4):
        readB(ks)
    for ks in range(7):
        a.wait(lg=f"b{ks}")
        for nt in range(7):
            f = ks * 7 + nt
            a.wait(vm=f"w{f}")
            c = "0" if ks == 0 else vr(ACC2 + 4 * nt, 4)
            a(f"v_mfma_f32_16x16x32_bf16 {vr(ACC2+4*nt,4)}, {vr(wreg(f),4)}, {vr(BF+4*(ks%4),4)}, {c}")
        if ks + 4 < 7:
            readB(ks + 4)
    a("v_and_b32 v2, 15, v1")
    a(f"v_mul_u32_u24 v2, {RED_ROW}, v2")
    a("v_lshrrev_b32 v3, 4, v1")
    a("v_lshl_add_u32 v2, v3, 4, v2")
    a(f"s_mul_i32 s35, s34, {2*RED_PART}")
    a("s_lshr_b32 s36, s3, 1")
    a("s_mul_i32 s36, s36, 448")
    a("s_add_u32 s35, s35, s36")
    a("v_add_u32 v2, s35, v2")
    a("s_nop 4")
    for nt in range(7):
        a(f"ds_write_b128 v2, {vr(ACC2+4*nt,4)} offset:{RED_L + 64*nt}")
    a("v_lshrrev_b32 v2, 3, v1")
    a("v_lshlrev_b32 v2, 8, v2")
    a("v_and_b32 v3, 7, v1")
    a("v_lshl_add_u32 v2, v3, 3, v2")
    a(f"s_mul_i32 s35, s3, {RED_ROW}")
    a("v_add_u32 v2, s35, v2")
    a("s_waitcnt lgkmcnt(0)")
    a("s_barrier")
    R = 40
    for part in range(4):
        for c in range(4):
            a(f"ds_read_b64 {vr(R+8*part+2*c,2)}, v2 offset:{RED_L + part*RED_PART + 64*c}")
    HX = 36 + 40
    a.wait(vm="all")
    for c in range(4):
        src0, src1 = XR + c // 2, XR + 2 + c // 2
        if c % 2 == 0:
            a(f"v_lshlrev_b32 v{HX+2*c}, 16, v{src0}")
            a(f"v_lshlrev_b32 v{HX+2*c+1}, 16, v{src1}")
        else:
            a(f"v_and_b32 v{HX+2*c}, 0xffff0000, v{src0}")
            a(f"v_and_b32 v{HX+2*c+1}, 0xffff0000, v{src1}")
    a("v_cmp_gt_u32 vcc, 56, v1")
    a("s_waitcnt lgkmcnt(0)")
    for part in range(4):
        for c in range(4):
            a(f"v_pk_add_f32 {vr(HX+2*c,2)}, {vr(HX+2*c,2)}, {vr(R+8*part+2*c,2)}")
    for r in range(8):
        a(f"v_cndmask_b32 v{HX+r}, 0, v{HX+r}, vcc")
    def el(e):
        return HX + 2 * (e % 4) + e // 4
    for u in range(4):
        a(f"v_cvt_pk_bf16_f32 v{R+u}, v{el(2*u)}, v{el(2*u+1)}")
    a(f"s_add_u32 s44, s44, {H_OFF}")
    a("s_mov_b64 exec, vcc")
    a(f"buffer_store_dwordx4 {vr(R,4)}, v{VL16}, s[28:31], s44 offen")
    a("s_mov_b64 exec, -1")
    TT = 88
    a(f"v_pk_add_f32 {vr(TT,2)}, {vr(HX,2)}, {vr(HX+2,2)}")
    a(f"v_pk_add_f32 {vr(TT+2,2)}, {vr(HX+4,2)}, {vr(HX+6,2)}")
    a(f"v_pk_add_f32 {vr(TT,2)}, {vr(TT,2)}, {vr(TT+2,2)}")
    a(f"v_add_f32 v{TT}, v{TT}, v{TT+1}")
    wave_allreduce(a, "v_add_f32", TT, TT + 1)
    a(f"v_mul_f32 v{TT}, {f32hex(-1.0/448)}, v{TT}")
    a(f"v_cndmask_b32 v{TT}, 0, v{TT}, vcc")
    for c in range(4):
        a(f"v_pk_add_f32 {vr(HX+2*c,2)}, {vr(HX+2*c,2)}, {vr(TT,2)} op_sel_hi:[1,0]")
    a(f"v_pk_mul_f32 {vr(TT,2)}, {vr(HX,2)}, {vr(HX,2)}")
    for c in range(1, 4):
        a(f"v_pk_fma_f32 {vr(TT,2)}, {vr(HX+2*c,2)}, {vr(HX+2*c,2)}, {vr(TT,2)}")
    a(f"v_add_f32 v{TT}, v{TT}, v{TT+1}")
    wave_allreduce(a, "v_add_f32", TT, TT + 1)
    a(f"v_mov_b32 v{TT+1}, {f32hex(EPS)}")
    a(f"v_fmac_f32 v{TT+1}, {f32hex(1.0/448)}, v{TT}")
    a(f"v_rsq_f32 v{TT}, v{TT+1}")
    a("s_lshr_b32 s35, s43, 4")
    a("s_mul_i32 s35, s35, 14336")
    a("s_and_b32 s36, s43, 15")
    a("s_lshl_b32 s36, s36, 4")
    a("s_add_u32 s35, s35, s36")
    a(f"s_add_u32 s35, s35, {XN2F_OFF}")
    a(f"v_mul_f32 v{TT}, {f32hex(LOG2E)}, v{TT}")
    a("v_lshlrev_b32 v2, 8, v1")
    for c in range(4):
        a(f"v_pk_mul_f32 {vr(HX+2*c,2)}, {vr(HX+2*c,2)}, {vr(TT,2)} op_sel_hi:[1,0]")
    for u in range(4):
        a(f"v_cvt_pk_bf16_f32 v{R+4+u}, v{el(2*u)}, v{el(2*u+1)}")
    a("s_mov_b64 exec, vcc")
    a(f"buffer_store_dwordx4 {vr(R+4,4)}, v2, s[28:31], s35 offen")
    a.stamp(10)
    a.end()
    a.label(f"L_{name}_end")
    a("s_endpgm")

    a.label(f"L_{name}_slow")
    a(f"v_cndmask_b32 v{Q+6}, v{Q+6}, 0, vcc")
    a(f"v_mov_b32 v{MRUN}, {f32hex(-3.0e38)}")
    a("s_mov_b32 s45, 0")
    a.label(f"L_{name}_sloop")
    a("s_waitcnt vmcnt(0)")
    a("s_barrier")
    a("s_sub_u32 s34, s45, 1")
    a("s_cmp_gt_u32 s34, 4")
    a(f"s_cbranch_scc1 L_{name}_snodma")
    a("s_add_u32 s34, s45, 2")
    a("s_and_b32 s34, s34, 3")
    a("s_lshl_b32 s34, s34, 15")
    a("s_add_u32 m0, s41, s34")
    a("s_nop 0")
    for f in range(4):
        a(f"buffer_load_dwordx4 v{VL16}, s[28:31], s40 offen offset:{1024*f} lds")
    a("s_add_u32 s40, s40, 16384")
    a.label(f"L_{name}_snodma")
    a("s_and_b32 s34, s45, 3")
    a("s_lshl_b32 s34, s34, 15")
    a(f"v_add_u32 v2, s34, v{VKV0}")
    a("s_mov_b32 s46, 0")
    a.label(f"L_{name}_stile")
    a(f"ds_read_b128 {vr(KF,4)}, v2")
    a(f"ds_read_b128 {vr(KF+4,4)}, v2 offset:1024")
    a(f"ds_read_b128 {vr(VF,4)}, v2 offset:2048")
    a(f"ds_read_b128 {vr(VF+4,4)}, v2 offset:3072")
    a("v_add_u32 v2, 4096, v2")
    a("s_waitcnt lgkmcnt(0)")
    a(f"v_mfma_f32_32x32x16_bf16 {vr(SB,16)}, {vr(KF,4)}, {vr(Q,4)}, 0")
    a(f"v_mfma_f32_32x32x16_bf16 {vr(SB,16)}, {vr(KF+4,4)}, {vr(Q+4,4)}, {vr(SB,16)}")
    a("s_nop 15")
    a(f"v_max3_f32 v{T0}, v{SB}, v{SB+1}, v{MRUN}")
    for r in range(2, 16, 2):
        a(f"v_max3_f32 v{T0}, v{SB+r}, v{SB+r+1}, v{T0}")
    a(f"v_mov_b32 v{T0+1}, v{T0}")
    a("s_nop 1")
    a(f"v_permlane32_swap_b32 v{T0}, v{T0+1}")
    a("s_nop 1")
    a(f"v_max_f32 v{T0}, v{T0}, v{T0+1}")
    a(f"v_sub_f32 v{T0+2}, v{MRUN}, v{T0}")
    a(f"v_exp_f32 v{T0+2}, v{T0+2}")
    a(f"v_mov_b32 v{MRUN}, v{T0}")
    for r in range(16):
        a(f"v_sub_f32 v{SB+r}, v{SB+r}, v{T0}")
        a(f"v_mul_f32 v{O+r}, v{O+r}, v{T0+2}")
    for r in range(16):
        a(f"v_exp_f32 v{SB+r}, v{SB+r}")
    a("s_nop 0")
    for u in range(8):
        a(f"v_cvt_pk_bf16_f32 v{P+u}, v{SB+2*u}, v{SB+2*u+1}")
    a("s_nop 1")
    a(f"v_mfma_f32_32x32x16_bf16 {vr(O,16)}, {vr(VF,4)}, {vr(P,4)}, {vr(O,16)}")
    a(f"v_mfma_f32_32x32x16_bf16 {vr(O,16)}, {vr(VF+4,4)}, {vr(P+4,4)}, {vr(O,16)}")
    a("s_nop 15")
    a("s_add_u32 s46, s46, 1")
    a("s_cmp_lt_u32 s46, 4")
    a(f"s_cbranch_scc1 L_{name}_stile")
    a("s_add_u32 s45, s45, 1")
    a("s_cmp_lt_u32 s45, 8")
    a(f"s_cbranch_scc1 L_{name}_sloop")
    save = a.vm
    for f in range(NPRE):
        wload(f)
    a.vm = save
    a("s_waitcnt vmcnt(0)")
    a(f"s_branch L_{name}_join")
    return a.text(), kernel_desc(name, 256, 64)
```

```python
import math
S, D, H, DH, F = 2048, 448, 16, 28, 1792
QF_OFF   = 0x000000
KVF_OFF  = 0x200000
KN_OFF   = 0x240000
B1F_OFF  = 0x241000
WOF_OFF  = 0x250000
W1F_OFF  = 0x2C0000
W2F_OFF  = 0x450000
H_OFF    = 0x5E0000
XN2F_OFF = 0x7A0000
ACTF_OFF = 0x960000
WS_USED  = 0x1060000
WS_SIZE  = 0x1200000
X_BYTES  = S * D * 2
WQ_BYTES = D * D * 2
WKV_BYTES = D * DH * 2
W1_BYTES = D * F * 2
B1_BYTES = F * 2
LOG2E = math.log2(math.e)
LN2 = math.log(2.0)
QSCALE = LOG2E / math.sqrt(DH)
EPS = 1e-5
M_LIMIT = 48.0
NAME = "sequential_preLN__grouped_kv_mqa__dense_activation_mish__prompt"
```

```python
import os
from asmlib import *
from playout import *
from k1 import ln_rows, proj_tile, norm2_allhalves
from k2 import wave_allreduce

OPT = set(os.environ.get("PKOPT", "").split(","))

XN_RT = 56 * 528
WQ_L = 2 * XN_RT
WKV_L = WQ_L + 448 * 128
OB_L = 131072
TRASH_L = OB_L + 14336
LX_L = 147456
KM_L = LX_L + 2048
ST_L = KM_L + 64
PK_LDS = ST_L + 512
RED_ROW = 452 * 4
RED_PART = 8 * RED_ROW
XN2_L = 0
ACT_L = 57344

XR = 4
Q, O, SB, P, KF, VF = 8, 16, 32, 64, 72, 88
VL16, VKV0, VKV1, MRUN = 104, 105, 106, 107
T0 = 108
WPRE, NPRE, NSTG = 112, 36, 8
WLATE, WSTG = 36, 56
ACC2, BF = 8, 88
SPIN = 1 << 20


def wreg(f):
    if f < NPRE:
        return WPRE + 4 * f
    if f < NPRE + NSTG:
        return WSTG + 4 * (f - NPRE)
    return WLATE + 4 * (f - NPRE - NSTG)


def poll_group(a, name, lab, fl_off):
    a("s_cmp_lg_u32 s3, 7")
    a(f"s_cbranch_scc1 L_{name}_{lab}_done")
    a("s_mov_b64 exec, 0xff")
    a("v_lshlrev_b32 v2, 7, v1")
    a("v_mov_b32 v3, s48")
    a("s_lshl_b32 s34, s32, 10")
    a(f"s_add_u32 s34, s34, {fl_off}")
    a("s_lshl_b32 s35, s33, 7")
    a("s_add_u32 s35, s35, s34")
    a("s_mov_b64 exec, 1")
    a("buffer_store_dword v3, v2, s[28:31], s35 offen sc1")
    a("s_mov_b64 exec, 0xff")
    a(f"s_mov_b32 s36, {SPIN}")
    a.label(f"L_{name}_{lab}_poll")
    a("buffer_load_dword v3, v2, s[28:31], s34 offen sc1")
    a("s_sub_u32 s36, s36, 1")
    a(f"s_cbranch_scc1 L_{name}_{lab}_out")
    a("s_waitcnt vmcnt(0)")
    a("v_cmp_ne_u32 vcc, s48, v3")
    a(f"s_cbranch_vccz L_{name}_{lab}_out")
    a("s_sleep 1")
    a(f"s_branch L_{name}_{lab}_poll")
    a.label(f"L_{name}_{lab}_out")
    a("s_waitcnt vmcnt(0)")
    a("s_mov_b64 exec, -1")
    a.label(f"L_{name}_{lab}_done")


def prep_issue(a, name):
    R = 108
    a("s_mov_b32 s50, 0")
    a("s_cmp_lt_u32 s3, 4")
    a(f"s_cbranch_scc1 L_{name}_p0")
    a("s_mul_i32 s51, s2, 3")
    a("s_add_u32 s51, s51, s3")
    a("s_sub_u32 s51, s51, 5")
    a("s_cmp_eq_u32 s3, 4")
    a(f"s_cbranch_scc0 L_{name}_pitem")
    a("s_cmp_lt_u32 s33, 4")
    a(f"s_cbranch_scc1 L_{name}_p0")
    a("s_add_u32 s51, s2, 640")
    a.label(f"L_{name}_pitem")
    a("v_and_b32 v2, 31, v1")
    a("v_lshrrev_b32 v3, 5, v1")
    a("s_cmp_ge_u32 s51, 882")
    a(f"s_cbranch_scc1 L_{name}_pbias")
    a("s_cmp_ge_u32 s51, 784")
    a(f"s_cbranch_scc1 L_{name}_pwo")
    a("s_cmp_ge_u32 s51, 392")
    a(f"s_cbranch_scc1 L_{name}_pw2")
    a.srd(52, 40, 41, W1_BYTES)
    a("s_mul_i32 s34, s51, 4682")
    a("s_lshr_b32 s34, s34, 16")
    a("s_mul_i32 s35, s34, 14")
    a("s_sub_u32 s35, s51, s35")
    a(f"s_mul_i32 s20, s34, {16*3584}")
    a("s_lshl_b32 s36, s35, 8")
    a("s_add_u32 s20, s20, s36")
    a(f"v_mul_u32_u24 v4, {8*3584}, v3")
    a("v_lshl_add_u32 v4, v2, 3, v4")
    a(f"v_add_u32 v5, {4*3584}, v4")
    a(f"s_mul_i32 s24, s35, {4*28672}")
    a("s_lshl_b32 s36, s34, 10")
    a("s_add_u32 s24, s24, s36")
    a(f"s_add_u32 s24, s24, {W1F_OFF}")
    for c in range(1, 4):
        a(f"s_add_u32 s{24+c}, s{23+c}, 28672")
    a("s_movk_i32 s36, 3584")
    a(f"s_branch L_{name}_px2")
    a.label(f"L_{name}_pwo")
    a.srd(52, 12, 13, WQ_BYTES)
    a("v_and_b32 v2, 15, v1")
    a("v_lshrrev_b32 v3, 4, v1")
    a("s_sub_u32 s51, s51, 784")
    a("s_mul_i32 s34, s51, 147")
    a("s_lshr_b32 s34, s34, 10")
    a("s_mul_i32 s35, s34, 7")
    a("s_sub_u32 s35, s51, s35")
    a("s_lshl_b32 s36, s34, 2")
    a(f"v_add_u32 v{R}, s36, v3")
    a(f"v_mul_u32_u24 v{R+1}, 147, v{R}")
    a(f"v_lshrrev_b32 v{R+1}, 10, v{R+1}")
    a(f"v_mul_u32_u24 v{R+2}, 7, v{R+1}")
    a(f"v_sub_u32 v{R}, v{R}, v{R+2}")
    offA = [0, 16, 4, 28, 44, 32, 20]
    tab = sum(o << (8 * i) for i, o in enumerate(offA))
    a(f"s_mov_b32 s36, {tab & 0xffffffff:#x}")
    a(f"s_mov_b32 s37, {tab >> 32:#x}")
    a(f"v_lshlrev_b32 v{R+2}, 3, v{R}")
    a(f"v_lshrrev_b64 v[{R+4}:{R+5}], v{R+2}, s[36:37]")
    a(f"v_and_b32 v{R+4}, 0xff, v{R+4}")
    a(f"v_mul_u32_u24 v{R+1}, 56, v{R+1}")
    a(f"v_add_u32 v{R+4}, v{R+4}, v{R+1}")
    a(f"v_cmp_eq_u32 vcc, 6, v{R}")
    a(f"v_mov_b32 v{R+2}, 28")
    a(f"v_mul_u32_u24 v4, 896, v{R+4}")
    a(f"v_cndmask_b32 v{R+2}, 8, v{R+2}, vcc")
    a("v_lshl_add_u32 v4, v2, 3, v4")
    a(f"v_mul_u32_u24 v{R+2}, 896, v{R+2}")
    a(f"v_add_u32 v5, v4, v{R+2}")
    a("s_lshl_b32 s20, s35, 7")
    a("s_cmp_ge_u32 s34, 7")
    a("s_cselect_b32 s38, 1, 0")
    a("s_mul_i32 s39, s38, 7")
    a("s_sub_u32 s39, s34, s39")
    a("s_mul_i32 s39, s39, 7")
    for c in range(4):
        a("s_lshl_b32 s34, s35, 2")
        a(f"s_add_u32 s34, s34, {c}")
        a("s_mul_i32 s36, s34, 147")
        a("s_lshr_b32 s36, s36, 10")
        a("s_mul_i32 s37, s36, 7")
        a("s_sub_u32 s34, s34, s37")
        a("s_lshl_b32 s36, s36, 1")
        a("s_add_u32 s36, s36, s38")
        a("s_mul_i32 s36, s36, 49")
        a("s_add_u32 s36, s36, s39")
        a("s_add_u32 s36, s36, s34")
        a("s_lshl_b32 s36, s36, 10")
        a(f"s_add_u32 s{24+c}, s36, {WOF_OFF}")
    a("s_movk_i32 s36, 896")
    a.label(f"L_{name}_px2")
    a("s_add_u32 s21, s20, s36")
    a("s_add_u32 s22, s21, s36")
    a("s_add_u32 s23, s22, s36")
    for t in range(8):
        a(f"buffer_load_dwordx2 {vr(R+2*t,2)}, v{4 + t//4}, s[52:55], s{20 + t%4} offen")
    a("s_mov_b32 s50, 1")
    a("s_waitcnt vmcnt(15)")
    a(f"s_branch L_{name}_pdone")
    a.label(f"L_{name}_pw2")
    a.srd(52, 44, 45, W1_BYTES)
    a("s_sub_u32 s51, s51, 392")
    a("s_mul_i32 s34, s51, 9363")
    a("s_lshr_b32 s34, s34, 16")
    a("s_mul_i32 s35, s34, 7")
    a("s_sub_u32 s35, s51, s35")
    a("s_lshr_b32 s36, s34, 2")
    a("s_lshl_b32 s36, s36, 7")
    a("s_and_b32 s37, s34, 3")
    a("s_add_u32 s36, s36, s37")
    a("s_mul_i32 s20, s36, 896")
    a("s_lshl_b32 s36, s35, 7")
    a("s_add_u32 s20, s20, s36")
    a("s_add_u32 s21, s20, 3584")
    a("s_add_u32 s22, s21, 3584")
    a("s_add_u32 s23, s22, 3584")
    a(f"v_mul_u32_u24 v4, {4*3584}, v3")
    a("v_lshl_add_u32 v4, v2, 2, v4")
    a(f"v_add_u32 v5, {8*3584}, v4")
    a(f"v_add_u32 v2, {16*3584}, v4")
    a(f"v_add_u32 v3, {24*3584}, v4")
    a("s_mul_i32 s36, s34, 147")
    a("s_lshr_b32 s36, s36, 10")
    a("s_mul_i32 s37, s36, 7")
    a("s_sub_u32 s38, s34, s37")
    a("s_add_u32 s37, s37, s35")
    a("s_mul_i32 s37, s37, 7")
    a("s_add_u32 s37, s37, s38")
    a("s_lshl_b32 s37, s37, 12")
    a(f"s_add_u32 s24, s37, {W2F_OFF}")
    va = [4, 5, 2, 3]
    for t in range(16):
        a(f"buffer_load_dword v{R+t}, v{va[t//4]}, s[52:55], s{20 + t%4} offen")
    a("s_mov_b32 s50, 2")
    a("s_waitcnt vmcnt(23)")
    a(f"s_branch L_{name}_pdone")
    a.label(f"L_{name}_pbias")
    a.srd(52, 42, 43, B1_BYTES)
    a("s_sub_u32 s51, s51, 882")
    a("v_lshrrev_b32 v2, 4, v1")
    a("v_bfe_u32 v3, v1, 3, 1")
    a("v_lshl_add_u32 v2, v3, 4, v2")
    a("v_bfe_u32 v3, v1, 1, 2")
    a("v_lshl_add_u32 v2, v3, 5, v2")
    a("v_and_b32 v3, 1, v1")
    a("v_lshl_add_u32 v2, v3, 3, v2")
    a("v_lshlrev_b32 v4, 1, v2")
    a("s_lshl_b32 s20, s51, 8")
    a("s_lshl_b32 s24, s51, 9")
    a(f"s_add_u32 s24, s24, {B1F_OFF}")
    for t in range(8):
        a(f"buffer_load_ushort v{R+t}, v4, s[52:55], s20 offen offset:{8*(t%2)}")
    a("s_mov_b32 s50, 3")
    a("s_waitcnt vmcnt(15)")
    a(f"s_branch L_{name}_pdone")
    a.label(f"L_{name}_p0")
    a("s_waitcnt vmcnt(7)")
    a.label(f"L_{name}_pdone")


def prep_finish(a, name):
    R, OO = 108, 124
    a("s_mov_b32 s36, 0x05040100")
    a("s_mov_b32 s37, 0x07060302")
    a("v_lshlrev_b32 v7, 4, v1")
    a("s_cmp_eq_u32 s50, 0")
    a(f"s_cbranch_scc1 L_{name}_s1")
    a("s_waitcnt vmcnt(0)")
    a("s_cmp_eq_u32 s50, 2")
    a(f"s_cbranch_scc1 L_{name}_f2")
    a("s_cmp_eq_u32 s50, 3")
    a(f"s_cbranch_scc1 L_{name}_f3")
    for c in range(4):
        for u in range(4):
            a(f"v_perm_b32 v{OO+4*c+u}, v{R+2*(2*u+1)+c//2}, v{R+2*(2*u)+c//2}, s{36 + c%2}")
        a(f"buffer_store_dwordx4 {vr(OO+4*c,4)}, v7, s[28:31], s{24+c} offen sc1")
    a(f"s_branch L_{name}_s1")
    a.label(f"L_{name}_f2")
    for m in range(2):
        for c in range(2):
            o = OO + 8 * m + 4 * c
            for u in range(4):
                a(f"v_perm_b32 v{o+u}, v{R+8*m+2*u+1}, v{R+8*m+2*u}, s{36 + c}")
            a(f"buffer_store_dwordx4 {vr(o,4)}, v7, s[28:31], s24 offen offset:{2048*m+1024*c} sc1")
    a(f"s_branch L_{name}_s1")
    a.label(f"L_{name}_f3")
    a(f"s_mov_b32 s36, {f32hex(LOG2E)}")
    a("v_lshlrev_b32 v7, 3, v1")
    for t in range(2):
        a(f"v_lshlrev_b32 v{R+t}, 16, v{R+t}")
        a(f"v_mul_f32 v{R+t}, s36, v{R+t}")
    a(f"buffer_store_dwordx2 {vr(R,2)}, v7, s[28:31], s24 offen sc1")
    a(f"s_branch L_{name}_s1")


def phase_a(a, name):
    a("s_and_b32 s32, s2, 31")
    a("s_lshr_b32 s33, s2, 5")
    a("v_lshrrev_b32 v3, 3, v1")
    a("v_and_b32 v4, 7, v1")
    a("s_lshl_b32 s34, s3, 3")
    a("v_add_u32 v5, s34, v3")
    a("v_mul_u32_u24 v5, 896, v5")
    a("v_lshl_add_u32 v5, v4, 4, v5")
    a("s_mul_i32 s35, s32, 57344")
    a("v_lshrrev_b32 v6, 4, v1")
    a("v_and_b32 v6, 1, v6")
    a("v_lshl_add_u32 v6, v6, 2, v4")
    a("v_and_b32 v6, 7, v6")
    a("v_mul_u32_u24 v7, 896, v3")
    a("v_lshl_add_u32 v6, v6, 4, v7")
    a("v_lshlrev_b32 v7, 4, v1")
    a("s_lshr_b32 s36, s3, 2")
    a(f"s_mul_i32 s36, s36, {XN_RT}")
    a("s_and_b32 s37, s3, 3")
    a("s_lshl_b32 s37, s37, 7")
    a("s_add_u32 s36, s36, s37")
    a("v_mul_u32_u24 v104, 528, v4")
    a("v_lshl_add_u32 v104, v3, 4, v104")
    a("v_add_u32 v104, s36, v104")
    a(f"s_mov_b32 s49, {EP_OFF}")
    a("s_waitcnt lgkmcnt(0)")
    a.stamp(1)
    a.srd(16, 4, 5, X_BYTES)
    X, Fv, T = 8, 40, 96
    for i in range(7):
        a(f"buffer_load_dwordx4 {vr(X+4*i,4)}, v5, s[16:19], s35 offen offset:{128*i}")
    a("s_load_dword s48, s[14:15], s49")
    a.srd(20, 6, 7, WQ_BYTES)
    a("s_cmp_lt_u32 s33, 2")
    a("s_cselect_b32 s24, s8, s10")
    a("s_cselect_b32 s25, s9, s11")
    a(f"s_mov_b32 s26, {WKV_BYTES}")
    a("s_mov_b32 s27, 0x20000")
    a.srd(28, 14, 15, WS_SIZE)
    a("s_mul_i32 s36, s3, 7")
    a("s_mul_i32 s37, s36, 7168")
    a("s_mul_i32 s38, s33, 112")
    a("s_add_u32 s37, s37, s38")
    a("s_lshl_b32 s38, s36, 10")
    a(f"s_add_u32 s38, s38, {WQ_L}")
    for i in range(7):
        a("s_mov_b32 m0, s38")
        a("s_add_u32 s38, s38, 1024")
        a("buffer_load_dwordx4 v6, s[20:23], s37 offen lds")
        a("s_add_u32 s37, s37, 7168")
    a("s_cmp_ge_u32 s33, 4")
    a(f"s_cbranch_scc1 L_{name}_nokv")
    a("s_lshl_b32 s37, s3, 10")
    a(f"s_add_u32 s38, s37, {WKV_L}")
    for i in range(3):
        a("s_mov_b32 m0, s38")
        a("s_add_u32 s38, s38, 8192")
        a("buffer_load_dwordx4 v7, s[24:27], s37 offen lds")
        a("s_add_u32 s37, s37, 8192")
    a("s_cmp_lg_u32 s3, 0")
    a(f"s_cbranch_scc1 L_{name}_nokv")
    a("s_mov_b32 m0, s38")
    a("s_nop 0")
    a("buffer_load_dwordx4 v7, s[24:27], s37 offen lds")
    a.label(f"L_{name}_nokv")
    prep_issue(a, name)
    a.stamp(2)
    ln_rows(a, X, Fv, T, EPS)
    for i in range(7):
        a(f"ds_write_b128 v104, {vr(X+4*i,4)} offset:{4224*i}")
    a("s_cmp_eq_u32 s50, 0")
    a(f"s_cbranch_scc1 L_{name}_w0")
    a("s_cmp_eq_u32 s50, 2")
    a(f"s_cbranch_scc1 L_{name}_w16")
    a("s_waitcnt vmcnt(8) lgkmcnt(0)")
    a(f"s_branch L_{name}_wd")
    a.label(f"L_{name}_w16")
    a("s_waitcnt vmcnt(16) lgkmcnt(0)")
    a(f"s_branch L_{name}_wd")
    a.label(f"L_{name}_w0")
    a("s_waitcnt vmcnt(0) lgkmcnt(0)")
    a.label(f"L_{name}_wd")
    a.stamp(3)
    a("s_barrier")
    a("s_mul_i32 s48, s48, 0x9E3779B1")
    a("s_add_u32 s48, s48, 0x7F4A7C15")
    a("s_mov_b32 s49, 0")
    a("s_cmp_lg_u32 s50, 0")
    a(f"s_cbranch_scc1 L_{name}_prep")
    ACC, VW, VX, FR = 8, 105, 106, 40
    a("v_lshrrev_b32 v2, 4, v1")
    a("v_and_b32 v3, 15, v1")
    a("v_lshrrev_b32 v4, 2, v3")
    a("v_and_b32 v3, 3, v3")
    a("v_lshrrev_b32 v5, 1, v2")
    a("v_lshl_add_u32 v4, v5, 3, v4")
    a("v_and_b32 v2, 1, v2")
    a("v_lshlrev_b32 v2, 5, v2")
    a("v_lshl_add_u32 v2, v3, 3, v2")
    a("v_and_b32 v3, 31, v1")
    a("v_lshrrev_b32 v5, 5, v1")
    a(f"v_mul_u32_u24 v{VX}, 528, v5")
    a(f"v_lshl_add_u32 v{VX}, v3, 4, v{VX}")
    a("v_cmp_lt_u32 vcc, 31, v1")
    a("s_cmp_eq_u32 s3, 4")
    a(f"s_cbranch_scc1 L_{name}_kv")
    a("s_lshr_b32 s36, s3, 1")
    a("s_and_b32 s37, s3, 1")
    a(f"s_mul_i32 s38, s36, {XN_RT}")
    a(f"v_add_u32 v{VX}, s38, v{VX}")
    a("s_mul_i32 s38, s37, 56")
    a("v_add_u32 v2, s38, v2")
    a("v_lshrrev_b32 v6, 1, v4")
    a("v_and_b32 v6, 1, v6")
    a("v_lshl_add_u32 v2, v6, 6, v2")
    a("v_and_b32 v2, 127, v2")
    a(f"v_lshl_add_u32 v{VW}, v4, 7, v2")
    a(f"v_add_u32 v{VW}, {WQ_L}, v{VW}")
    proj_tile(a, 2048, 512, False, ACC, VW, VX, FR)
    a.stamp(4)
    a(f"s_mov_b32 s38, {f32hex(QSCALE)}")
    for j in range(16):
        a(f"v_mul_f32 v{ACC+j}, s38, v{ACC+j}")
    for j in range(12, 16):
        a(f"v_cndmask_b32 v{ACC+j}, v{ACC+j}, 0, vcc")
    norm2_allhalves(a, ACC, T)
    a(f"v_sqrt_f32 v{T}, v{T}")
    a("s_nop 0")
    a(f"v_cndmask_b32 v{ACC+12}, v{ACC+12}, v{T}, vcc")
    for u in range(8):
        a(f"v_cvt_pk_bf16_f32 v{FR+u}, v{ACC+2*u}, v{ACC+2*u+1}")
    a("s_lshl_b32 s38, s33, 1")
    a("s_add_u32 s38, s38, s37")
    a("s_lshl_b32 s39, s32, 3")
    a("s_lshl_b32 s36, s36, 2")
    a("s_add_u32 s39, s39, s36")
    a("s_lshl_b32 s39, s39, 13")
    a("s_lshr_b32 s36, s38, 2")
    a("s_lshl_b32 s36, s36, 11")
    a("s_add_u32 s39, s39, s36")
    a("s_and_b32 s36, s38, 3")
    a("s_lshl_b32 s36, s36, 7")
    a("s_add_u32 s39, s39, s36")
    a("v_lshrrev_b32 v6, 3, v3")
    a("v_lshlrev_b32 v6, 13, v6")
    a("v_and_b32 v7, 7, v3")
    a("v_lshl_add_u32 v6, v7, 4, v6")
    a("v_lshl_add_u32 v6, v5, 9, v6")
    a(f"buffer_store_dwordx4 {vr(FR,4)}, v6, s[28:31], s39 offen sc1")
    a(f"buffer_store_dwordx4 {vr(FR+4,4)}, v6, s[28:31], s39 offen offset:1024 sc1")
    a(f"s_branch L_{name}_s1")
    a.label(f"L_{name}_kv")
    a("s_and_b32 s36, s33, 1")
    a(f"s_mul_i32 s38, s36, {XN_RT}")
    a(f"v_add_u32 v{VX}, s38, v{VX}")
    a(f"v_mul_u32_u24 v{VW}, 56, v4")
    a(f"v_add_u32 v{VW}, v{VW}, v2")
    a(f"v_add_u32 v{VW}, {WKV_L}, v{VW}")
    a("s_lshl_b32 s39, s32, 1")
    a("s_add_u32 s39, s39, s36")
    a("s_lshl_b32 s39, s39, 12")
    a(f"s_add_u32 s39, s39, {KVF_OFF}")
    a("v_lshlrev_b32 v7, 4, v1")
    a("s_cmp_ge_u32 s33, 2")
    a(f"s_cbranch_scc1 L_{name}_v")
    proj_tile(a, 896, 224, False, ACC, VW, VX, FR)
    for j in range(12, 16):
        a(f"v_cndmask_b32 v{ACC+j}, v{ACC+j}, 0, vcc")
    norm2_allhalves(a, ACC, T)
    a(f"v_cndmask_b32 v{ACC+12}, v{ACC+12}, 1.0, vcc")
    for u in range(8):
        a(f"v_cvt_pk_bf16_f32 v{FR+u}, v{ACC+2*u}, v{ACC+2*u+1}")
    a(f"buffer_store_dwordx4 {vr(FR,4)}, v7, s[28:31], s39 offen sc1")
    a(f"buffer_store_dwordx4 {vr(FR+4,4)}, v7, s[28:31], s39 offen offset:1024 sc1")
    for ctl in ("quad_perm:[1,0,3,2]", "quad_perm:[2,3,0,1]", "row_half_mirror", "row_mirror"):
        a("s_nop 1")
        a(f"v_max_f32_dpp v{T}, v{T}, v{T} {ctl} row_mask:0xf bank_mask:0xf")
    a("s_nop 1")
    a(f"v_readlane_b32 s36, v{T}, 0")
    a(f"v_readlane_b32 s38, v{T}, 16")
    a("s_max_u32 s49, s36, s38")
    a(f"s_branch L_{name}_s1")
    a.label(f"L_{name}_v")
    proj_tile(a, 896, 224, True, ACC, VW, VX, FR)
    for u in range(8):
        a(f"v_cvt_pk_bf16_f32 v{FR+u}, v{ACC+2*u}, v{ACC+2*u+1}")
    a("v_cmp_eq_u32 vcc, 28, v3")
    a("v_mov_b32 v6, 0x3f803f80")
    a("s_nop 0")
    a("v_cndmask_b32 v6, 0, v6, vcc")
    a("v_cmp_gt_u32 vcc, 28, v3")
    a("s_nop 1")
    for u in range(8):
        a(f"v_cndmask_b32 v{FR+u}, v6, v{FR+u}, vcc")
    a(f"buffer_store_dwordx4 {vr(FR,4)}, v7, s[28:31], s39 offen offset:2048 sc1")
    a(f"buffer_store_dwordx4 {vr(FR+4,4)}, v7, s[28:31], s39 offen offset:3072 sc1")
    a(f"s_branch L_{name}_s1")
    a.label(f"L_{name}_prep")
    prep_finish(a, name)


def sync1(a, name):
    a.label(f"L_{name}_s1")
    a.srd(24, 46, 47, X_BYTES)
    a.srd(52, 14, 15, WS_SIZE)
    a("s_cmp_eq_u32 s3, 7")
    a("s_cselect_b32 s54, 0, s54")
    a(f"v_lshlrev_b32 v{VL16}, 4, v1")
    a("s_and_b32 s20, s3, 3")
    a("s_lshr_b32 s21, s3, 2")
    a("s_lshl_b32 s34, s21, 14")
    a(f"v_add_u32 v{VKV0}, s34, v{VL16}")
    a(f"v_add_u32 v{VKV1}, 0x10000, v{VKV0}")
    a("s_lshl_b32 s40, s21, 5")
    a("s_add_u32 s40, s40, s20")
    a("s_lshl_b32 s40, s40, 12")
    a(f"s_add_u32 s40, s40, {KVF_OFF}")
    a("s_lshl_b32 s41, s3, 12")
    a("s_lshl_b32 s43, s32, 3")
    a("s_add_u32 s43, s43, s33")
    a("s_mul_i32 s42, s3, 50176")
    a(f"s_add_u32 s42, s42, {WOF_OFF}")
    a(f"s_add_u32 s22, s42, {NPRE*1024}")
    a(f"s_mul_i32 s44, s43, {8*896}")
    a("s_mul_i32 s34, s3, 112")
    a("s_add_u32 s44, s44, s34")
    a("v_and_b32 v2, 7, v1")
    a("v_mul_u32_u24 v2, 896, v2")
    a("v_lshrrev_b32 v3, 3, v1")
    a("v_lshl_add_u32 v0, v3, 4, v2")
    for r in range(16):
        a(f"v_mov_b32 v{O+r}, 0")
    a(f"v_mov_b32 v{MRUN}, 0")
    a.stamp(5)
    a("s_waitcnt vmcnt(0)")
    a.stamp(6)
    a("s_barrier")
    a.vm = []
    a.vmem(f"buffer_load_dwordx4 {vr(XR,4)}, v0, s[16:19], s44 offen", "x")
    a("s_cmp_lg_u32 s3, 4")
    a(f"s_cbranch_scc1 L_{name}_s1done")
    a("v_mov_b32 v32, s48")
    a("v_mov_b32 v33, s49")
    a("v_lshlrev_b32 v2, 7, v1")
    a("s_lshl_b32 s34, s2, 7")
    a(f"s_add_u32 s34, s34, {FL1_OFF}")
    a("s_mov_b64 exec, 1")
    a("buffer_store_dwordx2 v[32:33], v2, s[28:31], s34 offen sc1")
    a("s_mov_b64 exec, -1")
    for i in range(4):
        a(f"s_mov_b32 s{34+i}, {FL1_OFF + 8192*i}")
    a(f"s_mov_b32 s38, {SPIN}")
    a.label(f"L_{name}_s1poll")
    for i in range(4):
        a(f"buffer_load_dwordx2 {vr(34+2*i,2)}, v2, s[28:31], s{34+i} offen sc1")
    a("s_sub_u32 s38, s38, 1")
    a(f"s_cbranch_scc1 L_{name}_s1out")
    a("s_waitcnt vmcnt(0)")
    a("v_xor_b32 v32, s48, v34")
    a("v_xor_b32 v33, s48, v36")
    a("v_xor_b32 v42, s48, v38")
    a("v_xor_b32 v43, s48, v40")
    a("v_or3_b32 v32, v32, v33, v42")
    a("v_or_b32 v32, v32, v43")
    a("v_cmp_ne_u32 vcc, 0, v32")
    a(f"s_cbranch_vccz L_{name}_s1out")
    a("s_sleep 2")
    a(f"s_branch L_{name}_s1poll")
    a.label(f"L_{name}_s1out")
    a("s_waitcnt vmcnt(0)")
    a("v_max_f32 v35, v35, v37")
    a("v_max3_f32 v35, v35, v39, v41")
    wave_allreduce(a, "v_max_f32", 35, 36)
    a("v_sqrt_f32 v35, v35")
    a(f"v_mov_b32 v2, {KM_L}")
    a(f"v_mul_f32 v35, {f32hex(-1.02)}, v35")
    a("ds_write_b32 v2, v35")
    a("s_waitcnt lgkmcnt(0)")
    a.label(f"L_{name}_s1done")
    a("s_barrier")
    a.stamp(7)


def attention(a, name):
    def dma(c):
        a(f"s_add_u32 m0, s41, {(c % 4) * 32768}")
        src = "s40" if c < 8 else "s22"
        a("s_nop 0")
        for f in range(4):
            a.vmem(f"buffer_load_dwordx4 v{VL16}, s[28:31], {src} offen offset:{1024*f} sc1 lds", f"kv{c}")
        a(f"s_add_u32 {src}, {src}, {16384 if c < 8 else 4096}")

    def wload(f):
        if f % 4 == 0 and f > 0:
            a("s_add_u32 s42, s42, 4096")
        a.vmem(f"buffer_load_dwordx4 {vr(wreg(f),4)}, v{VL16}, s[28:31], s42 offen offset:{1024*(f%4)} sc1", f"w{f}")

    a("s_lshl_b32 s35, s43, 13")
    a("s_lshl_b32 s36, s20, 11")
    a("s_add_u32 s35, s35, s36")
    a(f"v_mov_b32 v2, {KM_L}")
    a.vmem(f"buffer_load_dwordx4 {vr(Q,4)}, v{VL16}, s[28:31], s35 offen sc1", "q")
    a.vmem(f"buffer_load_dwordx4 {vr(Q+4,4)}, v{VL16}, s[28:31], s35 offen offset:1024 sc1", "q")
    a(f"ds_read_b32 v{T0}, v2")
    dma(0)
    dma(1)
    dma(2)
    a(f"v_mov_b32 v{T0+2}, {f32hex(-M_LIMIT)}")
    a("v_cmp_lt_u32 vcc, 31, v1")
    a.wait(vm="q")
    a(f"v_lshlrev_b32 v{T0+1}, 16, v{Q+6}")
    a("s_waitcnt lgkmcnt(0)")
    a(f"v_mul_f32 v{T0}, v{T0}, v{T0+1}")
    a(f"v_cmp_nge_f32 s[46:47], v{T0}, v{T0+2}")
    a(f"v_lshrrev_b32 v{T0}, 16, v{T0}")
    a("s_nop 2")
    a("s_cmp_lg_u32 s47, 0")
    a(f"s_cbranch_scc1 L_{name}_slow")
    a(f"v_cndmask_b32 v{Q+6}, v{Q+6}, v{T0}, vcc")

    def kvaddr(i, frag):
        c, t = divmod(i, 4)
        slot = c % 4
        base = VKV0 if slot < 2 else VKV1
        return f"v{base} offset:{(slot % 2) * 32768 + t * 4096 + frag * 1024}"

    def readK(i):
        b = KF + 8 * (i % 2)
        a.lds(f"ds_read_b128 {vr(b,4)}, {kvaddr(i,0)}", f"k{i}")
        a.lds(f"ds_read_b128 {vr(b+4,4)}, {kvaddr(i,1)}", f"k{i}")

    def readV(i):
        b = VF + 8 * (i % 2)
        a.lds(f"ds_read_b128 {vr(b,4)}, {kvaddr(i,2)}", f"v{i}")
        a.lds(f"ds_read_b128 {vr(b+4,4)}, {kvaddr(i,3)}", f"v{i}")

    def qk(i, m):
        s = SB + 16 * (i % 2)
        k = KF + 8 * (i % 2) + 4 * m
        c = "0" if m == 0 else vr(s, 16)
        a(f"v_mfma_f32_32x32x16_bf16 {vr(s,16)}, {vr(k,4)}, {vr(Q+4*m,4)}, {c}")

    def pv(i, m):
        v = VF + 8 * (i % 2) + 4 * m
        a(f"v_mfma_f32_32x32x16_bf16 {vr(O,16)}, {vr(v,4)}, {vr(P+4*m,4)}, {vr(O,16)}")

    def ex(i, r):
        s = SB + 16 * (i % 2) + r
        a(f"v_exp_f32 v{s}, v{s}")

    def cv(i, u):
        s = SB + 16 * (i % 2) + 2 * u
        a(f"v_cvt_pk_bf16_f32 v{P+u}, v{s}, v{s+1}")

    a.wait(vm="kv0")
    a("s_barrier")
    a.stamp(8)
    readK(0)
    readK(1)
    readV(0)
    a.wait(lg="k0")
    qk(0, 0)
    qk(0, 1)
    a("s_nop 7")
    a("s_nop 3")
    wq = list(range(NPRE))
    NT = 32
    for i in range(NT):
        c = i // 4
        if i % 4 == 2 and c + 1 <= 7:
            a.wait(vm=f"kv{c+1}")
            a("s_barrier")
            dma(c + 3)
        a(f"s_setprio {3 - (i + 2) % 4}")
        if i + 1 < NT:
            a.wait(lg=f"k{i+1}")
            qk(i + 1, 0)
        ex(i, 0)
        if i + 2 < NT:
            readK(i + 2)
        for r in range(1, 5):
            ex(i, r)
        if i > 0:
            pv(i - 1, 1)
        ex(i, 5)
        if i + 1 < NT:
            readV(i + 1)
        ex(i, 6)
        ex(i, 7)
        for u in range(4):
            cv(i, u)
        if i + 1 < NT:
            qk(i + 1, 1)
        ex(i, 8)
        if i >= 2 and wq:
            wload(wq.pop(0))
            if i % 4 in (0, 1) and wq:
                wload(wq.pop(0))
        for r in range(9, 13):
            ex(i, r)
        a.wait(lg=f"v{i}")
        pv(i, 0)
        for r in range(13, 16):
            ex(i, r)
        for u in range(4, 8):
            cv(i, u)
    assert not wq
    a("s_setprio 0")
    a("s_nop 0")
    pv(NT - 1, 1)
    a.label(f"L_{name}_join")
    a.stamp(9)
    a("s_add_u32 s42, s42, 8192")
    for f in range(NPRE + NSTG, 49):
        wload(f)
    return wload


def slow_path(a, name):
    a.label(f"L_{name}_slow")
    a(f"v_cndmask_b32 v{Q+6}, v{Q+6}, 0, vcc")
    a(f"v_mov_b32 v{MRUN}, {f32hex(-3.0e38)}")
    a("s_mov_b32 s45, 0")
    a("s_movk_i32 s23, 0x4000")
    a.label(f"L_{name}_sloop")
    a("s_waitcnt vmcnt(0)")
    a("s_barrier")
    a("s_cmp_eq_u32 s45, 0")
    a(f"s_cbranch_scc1 L_{name}_snodma")
    a("s_cmp_eq_u32 s45, 6")
    a("s_cselect_b32 s40, s22, s40")
    a("s_cselect_b32 s23, 0x1000, s23")
    a("s_add_u32 s34, s45, 2")
    a("s_and_b32 s34, s34, 3")
    a("s_lshl_b32 s34, s34, 15")
    a("s_add_u32 m0, s41, s34")
    a("s_nop 0")
    for f in range(4):
        a(f"buffer_load_dwordx4 v{VL16}, s[28:31], s40 offen offset:{1024*f} sc1 lds")
    a("s_add_u32 s40, s40, s23")
    a.label(f"L_{name}_snodma")
    a("s_and_b32 s34, s45, 3")
    a("s_lshl_b32 s34, s34, 15")
    a(f"v_add_u32 v2, s34, v{VKV0}")
    a("s_mov_b32 s46, 0")
    a.label(f"L_{name}_stile")
    a(f"ds_read_b128 {vr(KF,4)}, v2")
    a(f"ds_read_b128 {vr(KF+4,4)}, v2 offset:1024")
    a(f"ds_read_b128 {vr(VF,4)}, v2 offset:2048")
    a(f"ds_read_b128 {vr(VF+4,4)}, v2 offset:3072")
    a("v_add_u32 v2, 4096, v2")
    a("s_waitcnt lgkmcnt(0)")
    a(f"v_mfma_f32_32x32x16_bf16 {vr(SB,16)}, {vr(KF,4)}, {vr(Q,4)}, 0")
    a(f"v_mfma_f32_32x32x16_bf16 {vr(SB,16)}, {vr(KF+4,4)}, {vr(Q+4,4)}, {vr(SB,16)}")
    a("s_nop 15")
    a(f"v_max3_f32 v{T0}, v{SB}, v{SB+1}, v{MRUN}")
    for r in range(2, 16, 2):
        a(f"v_max3_f32 v{T0}, v{SB+r}, v{SB+r+1}, v{T0}")
    a(f"v_mov_b32 v{T0+1}, v{T0}")
    a("s_nop 1")
    a(f"v_permlane32_swap_b32 v{T0}, v{T0+1}")
    a("s_nop 1")
    a(f"v_max_f32 v{T0}, v{T0}, v{T0+1}")
    a(f"v_sub_f32 v{T0+2}, v{MRUN}, v{T0}")
    a(f"v_exp_f32 v{T0+2}, v{T0+2}")
    a(f"v_mov_b32 v{MRUN}, v{T0}")
    for r in range(16):
        a(f"v_sub_f32 v{SB+r}, v{SB+r}, v{T0}")
        a(f"v_mul_f32 v{O+r}, v{O+r}, v{T0+2}")
    for r in range(16):
        a(f"v_exp_f32 v{SB+r}, v{SB+r}")
    a("s_nop 0")
    for u in range(8):
        a(f"v_cvt_pk_bf16_f32 v{P+u}, v{SB+2*u}, v{SB+2*u+1}")
    a("s_nop 1")
    a(f"v_mfma_f32_32x32x16_bf16 {vr(O,16)}, {vr(VF,4)}, {vr(P,4)}, {vr(O,16)}")
    a(f"v_mfma_f32_32x32x16_bf16 {vr(O,16)}, {vr(VF+4,4)}, {vr(P+4,4)}, {vr(O,16)}")
    a("s_nop 15")
    a("s_add_u32 s46, s46, 1")
    a("s_cmp_lt_u32 s46, 4")
    a(f"s_cbranch_scc1 L_{name}_stile")
    a("s_add_u32 s45, s45, 1")
    a("s_cmp_lt_u32 s45, 8")
    a(f"s_cbranch_scc1 L_{name}_sloop")
    for f in range(NPRE):
        if f % 4 == 0 and f > 0:
            a("s_add_u32 s42, s42, 4096")
        a(f"buffer_load_dwordx4 {vr(wreg(f),4)}, v{VL16}, s[28:31], s42 offen offset:{1024*(f%4)} sc1")
    a("s_waitcnt vmcnt(0)")
    a(f"s_branch L_{name}_join")


HX = 8
W1R = WPRE
A0, A1, BR, MU, PK = 16, 32, 48, 64, 80
NW2E = 12


def w2reg(q):
    if q < 4:
        return 88 + 4 * q
    if q < NW2E:
        return 224 + 4 * (q - 4)
    return W1R + 4 * (q - NW2E)


def el(e):
    return HX + 2 * (e % 4) + e // 4


def w1load(a, ks):
    if ks % 4 == 0 and ks > 0:
        a("s_add_u32 s45, s45, 4096")
    a.vmem(f"buffer_load_dwordx4 {vr(W1R+4*ks,4)}, v{VL16}, s[52:55], s45 offen offset:{1024*(ks%4)} sc1", f"a{ks}")


def epilogue(a, name):
    a("s_mul_i32 s45, s33, 7")
    a("s_add_u32 s45, s45, s3")
    a("s_lshl_b32 s46, s45, 7")
    a(f"s_add_u32 s46, s46, {B1F_OFF}")
    a("s_lshl_b32 s47, s45, 12")
    a("s_mul_i32 s47, s47, 7")
    a(f"s_add_u32 s45, s47, {W1F_OFF}")
    a(f"s_add_u32 s47, s47, {W2F_OFF}")
    a("v_and_b32 v2, 31, v1")
    a("s_lshl_b32 s34, s3, 8")
    a(f"s_add_u32 s34, s34, {LX_L}")
    a("v_lshl_add_u32 v3, v2, 3, s34")
    a(f"v_add_u32 v{VKV1}, s41, v{VL16}")
    a(f"v_mov_b32 v{T0}, v{O+12}")
    a(f"v_mov_b32 v{T0+1}, v{O+12}")
    a("s_nop 1")
    a(f"v_permlane32_swap_b32 v{T0}, v{T0+1}")
    a("s_nop 0")
    a(f"v_mov_b32 v{T0}, v{MRUN}")
    a(f"ds_write_b64 v3, {vr(T0,2)}")
    a("v_xor_b32 v3, 1024, v3")
    a.wait(vm="kv9")
    for f in range(NSTG):
        a(f"ds_read_b128 {vr(WSTG+4*f,4)}, v{VKV1} offset:{(f//4)*32768 + (f%4)*1024}")
    a("s_waitcnt lgkmcnt(8)")
    a("s_barrier")
    a(f"ds_read_b64 {vr(T0+2,2)}, v3")
    a("v_lshrrev_b32 v3, 3, v2")
    a("s_lshl_b32 s34, s20, 1")
    a(f"v_lshrrev_b32 v{VKV0}, 1, v3")
    a(f"v_add_u32 v{VKV0}, s34, v{VKV0}")
    a(f"v_mul_u32_u24 v{VKV0}, 7, v{VKV0}")
    a("v_and_b32 v3, 1, v3")
    a("v_and_b32 v2, 7, v2")
    a("s_lshl_b32 s34, s21, 7")
    a(f"s_add_u32 s34, s34, {OB_L}")
    a("v_lshl_add_u32 v2, v2, 4, s34")
    a(f"v_lshl_add_u32 v2, v{VKV0}, 8, v2")
    a(f"v_mul_u32_u24 v{VKV0}, 768, v3")
    a(f"v_add_u32 v{VKV0}, v{VKV0}, v2")
    a(f"v_lshl_add_u32 v2, v3, 3, v2")
    a(f"v_add_u32 v2, {6*256}, v2")
    a("v_cmp_lt_u32 vcc, 31, v1")
    a(f"v_add_u32 v3, 256, v{VKV0}")
    a(f"v_add_u32 v{VKV1}, 512, v{VKV0}")
    a(f"v_cndmask_b32 v{VKV0}, v{VKV0}, v{VKV1}, vcc")
    a("v_cndmask_b32 v2, v3, v2, vcc")
    a("v_add_u32 v3, 8, v3")
    a(f"v_add_u32 v{VKV1}, {TRASH_L}, v{VL16}")
    a(f"v_cndmask_b32 v3, v3, v{VKV1}, vcc")
    a("s_waitcnt lgkmcnt(0)")
    a(f"v_max_f32 v{MRUN}, v{T0}, v{T0+2}")
    a(f"v_sub_f32 v{T0}, v{T0}, v{MRUN}")
    a(f"v_sub_f32 v{T0+2}, v{T0+2}, v{MRUN}")
    a(f"v_exp_f32 v{T0}, v{T0}")
    a(f"v_exp_f32 v{T0+2}, v{T0+2}")
    a(f"v_mul_f32 v{T0+1}, v{T0+1}, v{T0}")
    a(f"v_fmac_f32 v{T0+1}, v{T0+3}, v{T0+2}")
    a(f"v_rcp_f32 v{T0+1}, v{T0+1}")
    a("s_nop 0")
    a(f"v_mul_f32 v{T0}, v{T0}, v{T0+1}")
    for j in range(8):
        a(f"v_pk_mul_f32 {vr(O+2*j,2)}, {vr(O+2*j,2)}, {vr(T0,2)} op_sel_hi:[1,0]")
    for u in range(8):
        a(f"v_cvt_pk_bf16_f32 v{Q+u}, v{O+2*u}, v{O+2*u+1}")
    a(f"ds_write_b128 v{VKV0}, {vr(Q,4)}")
    a(f"ds_write_b64 v2, {vr(Q+4,2)}")
    a(f"ds_write_b64 v3, {vr(Q+6,2)}")
    a("s_and_b32 s34, s3, 1")
    a("s_mul_i32 s35, s34, 7168")
    a(f"s_add_u32 s35, s35, {OB_L}")
    a(f"v_add_u32 v2, s35, v{VL16}")
    a("s_waitcnt lgkmcnt(0)")
    a("s_barrier")
    a.stamp(10)
    a.lg = []

    def readB(ks):
        a.lds(f"ds_read_b128 {vr(BF+4*(ks%4),4)}, v2 offset:{1024*ks}", f"b{ks}")
    for ks in range(4):
        readB(ks)
    nw1 = 0
    for ks in range(7):
        a.wait(lg=f"b{ks}")
        for nt in range(7):
            f = ks * 7 + nt
            a.wait(vm=f"w{f}")
            c = "0" if ks == 0 else vr(ACC2 + 4 * nt, 4)
            a(f"v_mfma_f32_16x16x32_bf16 {vr(ACC2+4*nt,4)}, {vr(wreg(f),4)}, {vr(BF+4*(ks%4),4)}, {c}")
            if ks >= 1 and nt in (1, 4) or ks >= 5 and nt == 6:
                w1load(a, nw1)
                nw1 += 1
        if ks + 4 < 7:
            readB(ks + 4)
    a("v_and_b32 v2, 15, v1")
    a(f"v_mul_u32_u24 v2, {RED_ROW}, v2")
    a("v_lshrrev_b32 v3, 4, v1")
    a("v_lshl_add_u32 v2, v3, 4, v2")
    a(f"s_mul_i32 s35, s34, {2*RED_PART}")
    a("s_lshr_b32 s36, s3, 1")
    a("s_mul_i32 s36, s36, 448")
    a("s_add_u32 s35, s35, s36")
    a("v_add_u32 v2, s35, v2")
    a("s_nop 4")
    for nt in range(7):
        a(f"ds_write_b128 v2, {vr(ACC2+4*nt,4)} offset:{64*nt}")
    a("s_mul_i32 s35, s3, 7")
    a("v_lshrrev_b32 v3, 3, v1")
    a("v_add_u32 v3, s35, v3")
    a("v_and_b32 v36, 7, v1")
    a(f"v_mul_u32_u24 v2, {RED_ROW}, v36")
    a("v_lshrrev_b32 v37, 3, v3")
    a("v_lshl_add_u32 v2, v37, 8, v2")
    a("v_and_b32 v37, 7, v3")
    a("v_lshl_add_u32 v2, v37, 3, v2")
    a("v_lshlrev_b32 v3, 9, v3")
    a(f"v_lshl_add_u32 v{VKV0}, v36, 4, v3")
    a(f"v_lshlrev_b32 v{VKV1}, 6, v36")
    a(f"v_add_u32 v{VKV1}, {ST_L}, v{VKV1}")
    a("v_cmp_gt_u32 vcc, 56, v1")
    a("s_waitcnt lgkmcnt(0)")
    a.stamp(11)
    a("s_barrier")
    R = 40
    for part in range(4):
        for c in range(4):
            a(f"ds_read_b64 {vr(R+8*part+2*c,2)}, v2 offset:{part*RED_PART + 64*c}")
    for c in range(4):
        src0, src1 = XR + c // 2, XR + 2 + c // 2
        if c % 2 == 0:
            a(f"v_lshlrev_b32 v{HX+2*c}, 16, v{src0}")
            a(f"v_lshlrev_b32 v{HX+2*c+1}, 16, v{src1}")
        else:
            a(f"v_and_b32 v{HX+2*c}, 0xffff0000, v{src0}")
            a(f"v_and_b32 v{HX+2*c+1}, 0xffff0000, v{src1}")
    a("v_lshrrev_b32 v3, 5, v1")
    a(f"v_lshl_add_u32 v3, v3, 5, v{VKV1}")
    a("s_lshl_b32 s35, s3, 2")
    a("v_add_u32 v3, s35, v3")
    for part in range(4):
        a(f"s_waitcnt lgkmcnt({12-4*part})")
        for c in range(4):
            a(f"v_pk_add_f32 {vr(HX+2*c,2)}, {vr(HX+2*c,2)}, {vr(R+8*part+2*c,2)}")
    TT = 16
    a(f"v_pk_add_f32 {vr(TT,2)}, {vr(HX,2)}, {vr(HX+2,2)}")
    a(f"v_pk_mul_f32 {vr(TT+2,2)}, {vr(HX,2)}, {vr(HX,2)}")
    a(f"v_pk_add_f32 {vr(TT,2)}, {vr(TT,2)}, {vr(HX+4,2)}")
    a(f"v_pk_fma_f32 {vr(TT+2,2)}, {vr(HX+2,2)}, {vr(HX+2,2)}, {vr(TT+2,2)}")
    a(f"v_pk_add_f32 {vr(TT,2)}, {vr(TT,2)}, {vr(HX+6,2)}")
    a(f"v_pk_fma_f32 {vr(TT+2,2)}, {vr(HX+4,2)}, {vr(HX+4,2)}, {vr(TT+2,2)}")
    a(f"v_add_f32 v{TT}, v{TT}, v{TT+1}")
    a(f"v_pk_fma_f32 {vr(TT+2,2)}, {vr(HX+6,2)}, {vr(HX+6,2)}, {vr(TT+2,2)}")
    a(f"v_cndmask_b32 v{TT}, 0, v{TT}, vcc")
    a(f"v_add_f32 v{TT+2}, v{TT+2}, v{TT+3}")
    a(f"v_cndmask_b32 v{TT+1}, 0, v{TT+2}, vcc")
    a("s_nop 1")
    a(f"v_permlane32_swap_b32 v{TT}, v{TT+1}")
    a("s_nop 1")
    a(f"v_add_f32 v{TT}, v{TT}, v{TT+1}")
    a(f"v_mov_b32 v{TT+1}, v{TT}")
    a("s_nop 1")
    a(f"v_permlane16_swap_b32 v{TT}, v{TT+1}")
    a("s_nop 1")
    a(f"v_add_f32 v{TT}, v{TT}, v{TT+1}")
    a("s_nop 1")
    a(f"v_add_f32_dpp v{TT}, v{TT}, v{TT} row_ror:8 row_mask:0xf bank_mask:0xf")
    a(f"ds_write_b32 v3, v{TT}")
    a("s_mul_i32 s35, s32, 57344")
    a("s_lshr_b32 s36, s33, 2")
    a("s_mul_i32 s36, s36, 28672")
    a("s_add_u32 s36, s36, s35")
    a("s_and_b32 s37, s33, 3")
    a("s_lshl_b32 s37, s37, 7")
    a("s_add_u32 s36, s36, s37")
    a(f"s_add_u32 s36, s36, {XN2F_OFF}")
    a("s_mul_i32 s37, s3, 7168")
    a("s_add_u32 s40, s35, s37")
    a(f"s_add_u32 s40, s40, {XN2F_OFF}")
    a("s_waitcnt lgkmcnt(0)")
    a("s_barrier")
    for i in range(4):
        a(f"ds_read_b128 {vr(R+4*i,4)}, v{VKV1} offset:{16*i}")
    a(f"v_mov_b32 v{TT+3}, {f32hex(EPS)}")
    a("s_waitcnt lgkmcnt(0)")
    a(f"v_pk_add_f32 {vr(R,2)}, {vr(R,2)}, {vr(R+2,2)}")
    a(f"v_pk_add_f32 {vr(R+8,2)}, {vr(R+8,2)}, {vr(R+10,2)}")
    a(f"v_pk_add_f32 {vr(R+4,2)}, {vr(R+4,2)}, {vr(R+6,2)}")
    a(f"v_pk_add_f32 {vr(R+12,2)}, {vr(R+12,2)}, {vr(R+14,2)}")
    a(f"v_pk_add_f32 {vr(R,2)}, {vr(R,2)}, {vr(R+4,2)}")
    a(f"v_pk_add_f32 {vr(R+8,2)}, {vr(R+8,2)}, {vr(R+12,2)}")
    a(f"v_add_f32 v{R}, v{R}, v{R+1}")
    a(f"v_add_f32 v{R+8}, v{R+8}, v{R+9}")
    a(f"v_mul_f32 v{TT}, {f32hex(-1.0/448)}, v{R}")
    a(f"v_mul_f32 v{TT+1}, {f32hex(1.0/448)}, v{R+8}")
    a(f"v_fma_f32 v{TT+1}, -v{TT}, v{TT}, v{TT+1}")
    a(f"v_max_f32 v{TT+1}, 0, v{TT+1}")
    a(f"v_add_f32 v{TT+1}, v{TT+1}, v{TT+3}")
    a(f"v_rsq_f32 v{TT+2}, v{TT+1}")
    a("s_nop 0")
    a(f"v_mul_f32 v{TT+2}, {f32hex(LOG2E)}, v{TT+2}")
    for c in range(4):
        a(f"v_pk_add_f32 {vr(R+2*c,2)}, {vr(HX+2*c,2)}, {vr(TT,2)} op_sel_hi:[1,0]")
    for c in range(4):
        a(f"v_pk_mul_f32 {vr(R+2*c,2)}, {vr(R+2*c,2)}, {vr(TT+2,2)} op_sel_hi:[1,0]")
    for u in range(4):
        a(f"v_cvt_pk_bf16_f32 v{R+8+u}, v{el(2*u)-HX+R}, v{el(2*u+1)-HX+R}")
    a("s_mov_b64 exec, vcc")
    a.vmem(f"buffer_store_dwordx4 {vr(R+8,4)}, v{VKV0}, s[28:31], s36 offen sc1", "xs")
    a("s_mov_b64 exec, -1")
    a.stamp(12)
    while nw1 < 28:
        w1load(a, nw1)
        nw1 += 1
    a("v_lshrrev_b32 v3, 5, v1")
    a("v_lshlrev_b32 v3, 6, v3")
    for i in range(8):
        a.vmem(f"buffer_load_dwordx4 {vr(A0+4*i,4)}, v3, s[52:55], s46 offen offset:{16*(i%4)} sc1", "b1")
    a.wait(vm="xs")
    a("s_barrier")
    poll_group(a, name, "s2", FL2_OFF)
    a("s_barrier")
    a.stamp(13)


def mish_ops(acc, half, u, pk):
    e, w = acc + 8 * half, u + 8
    ops = []
    ops += [f"v_exp_f32 v{u+r}, v{e+r}" for r in range(8)]
    ops += [f"v_fma_f32 v{w+r}, v{u+r}, 0.5, 1.0" for r in range(8)]
    ops += [f"v_fma_f32 v{w+r}, v{u+r}, v{w+r}, 1.0" for r in range(8)]
    ops += [f"v_rcp_f32 v{w+r}, v{w+r}" for r in range(8)]
    ops += [f"v_fma_f32 v{u+r}, -v{e+r}, v{w+r}, v{e+r}" for r in range(8)]
    ops += [f"v_cvt_pk_bf16_f32 v{pk+r}, v{u+2*r}, v{u+2*r+1}" for r in range(4)]
    return ops


def ffn(a, name):
    VA, VP = VKV0, VKV1
    a("s_mul_i32 s34, s3, 7168")
    a("s_mov_b32 m0, s34")
    a("s_nop 0")
    for f in range(4):
        a.vmem(f"buffer_load_dwordx4 v{VL16}, s[28:31], s40 offen offset:{1024*f} sc1 lds", "xn")
    a("s_add_u32 m0, s34, 4096")
    a("s_add_u32 s40, s40, 4096")
    for f in range(3):
        a.vmem(f"buffer_load_dwordx4 v{VL16}, s[28:31], s40 offen offset:{1024*f} sc1 lds", "xn")

    def w2load(q):
        if q % 4 == 0 and q > 0:
            a("s_add_u32 s47, s47, 4096")
        a.vmem(f"buffer_load_dwordx4 {vr(w2reg(q),4)}, v{VL16}, s[52:55], s47 offen offset:{1024*(q%4)} sc1", f"c{q}")
    for q in range(NW2E):
        w2load(q)
    a(f"v_add_u32 v{VA}, {ACT_L}, v{VL16}")
    a("s_lshl_b32 s34, s3, 11")
    a(f"v_add_u32 v2, s34, v{VA}")
    a("v_bfe_u32 v3, v1, 3, 2")
    a(f"v_mul_u32_u24 v{VP}, 57344, v3")
    a("v_lshrrev_b32 v3, 5, v1")
    a(f"v_lshl_add_u32 v{VP}, v3, 7, v{VP}")
    a("v_and_b32 v3, 7, v1")
    a(f"v_lshl_add_u32 v{VP}, v3, 4, v{VP}")
    a("s_lshl_b32 s38, s32, 6")
    a("s_add_u32 s38, s38, s33")
    a("s_mul_i32 s38, s38, 7168")
    a("s_lshl_b32 s39, s3, 10")
    a("s_add_u32 s38, s38, s39")
    a(f"s_add_u32 s38, s38, {PART_OFF}")
    a(f"s_add_u32 s39, s38, {4*57344}")
    a.wait(vm="xn")
    a("s_barrier")
    a.stamp(14)
    a("s_cmp_eq_u32 s3, 7")
    a(f"s_cbranch_scc1 L_{name}_idle7")
    vm_save = list(a.vm)
    a.lg = []

    def readX(n):
        a.lds(f"ds_read_b128 {vr(BR+4*(n%4),4)}, v{VL16} offset:{XN2_L + 1024*n}", f"x{n}")
    for n in range(4):
        readX(n)
    fill = []
    for h in range(2):
        fill += mish_ops(A0, h, MU, PK + 4 * h) + [("w", h)]
    for n in range(56):
        mt, ks = divmod(n, 28)
        acc = vr(A0 if mt == 0 else A1, 16)
        a.wait(lg=f"x{n}")
        a(f"v_mfma_f32_32x32x16_bf16 {acc}, {vr(W1R+4*ks,4)}, {vr(BR+4*(n%4),4)}, {acc}")
        if n + 4 < 56:
            readX(n + 4)
        if mt == 1 and NW2E + ks < 28:
            w2load(NW2E + ks)
        if mt == 1 and ks >= 2:
            budget = 22
            while fill and budget > 0:
                op = fill.pop(0)
                if isinstance(op, tuple):
                    a("s_nop 0")
                    a.lds(f"ds_write_b128 v2, {vr(PK+4*op[1],4)} offset:{1024*op[1]}", "aw")
                else:
                    a(op)
                    budget -= 8 if op.startswith(("v_exp", "v_rcp")) else 4
    while fill:
        op = fill.pop(0)
        if isinstance(op, tuple):
            a("s_nop 0")
            a.lds(f"ds_write_b128 v2, {vr(PK+4*op[1],4)} offset:{1024*op[1]}", "aw")
        else:
            a(op)
    a("s_nop 7")
    a("s_nop 3")
    for h in range(2):
        for op in mish_ops(A1, h, MU, PK + 4 * h):
            a(op)
        a("s_nop 0")
        a(f"ds_write_b128 v2, {vr(PK+4*h,4)} offset:{14336+1024*h}")
    a("s_waitcnt lgkmcnt(0)")
    a.stamp(15)
    a("s_barrier")
    a.lg = []

    def readA(n):
        a.lds(f"ds_read_b128 {vr(BR+4*(n%4),4)}, v{VA} offset:{1024*n}", f"y{n}")
    for n in range(4):
        readA(n)
    C = [(A0, A1), (W1R + 64, W1R + 80)]

    def pack_ops(mt):
        ops = []
        for j in range(4):
            ops += [f"v_cvt_pk_bf16_f32 v{MU+4*j+t}, v{C[mt][0]+4*j+t}, v{C[mt][1]+4*j+t}" for t in range(4)]
            ops.append(f"buffer_store_dwordx4 {vr(MU+4*j,4)}, v{VP}, s[28:31], s{38+mt} offen offset:{256*j} sc1")
        return ops
    fill = pack_ops(0)
    for n in range(28):
        mt, ks = divmod(n, 14)
        a.wait(lg=f"y{n}")
        for c in range(2):
            a.wait(vm=f"c{2*ks+c}")
            acc = vr(C[mt][c], 16)
            a(f"v_mfma_f32_32x32x16_bf16 {acc}, {vr(w2reg(2*ks+c),4)}, {vr(BR+4*(n%4),4)}, {'0' if ks == 0 else acc}")
            if mt == 1 and ks >= 1 and fill:
                for _ in range(3):
                    if fill:
                        a(fill.pop(0))
        if n + 4 < 28:
            readA(n + 4)
    assert not fill
    a("s_nop 7")
    a("s_nop 3")
    for op in pack_ops(1):
        a(op)
    a.stamp(16)
    a(f"s_branch L_{name}_pub3")
    a.label(f"L_{name}_idle7")
    a("s_cmp_lg_u32 s2, 0")
    a(f"s_cbranch_scc1 L_{name}_noep")
    a("v_mov_b32 v2, s48")
    a("v_mov_b32 v3, 0")
    a(f"s_mov_b32 s34, {EP_OFF}")
    a("s_mov_b64 exec, 1")
    a("buffer_store_dword v2, v3, s[28:31], s34 offen sc1")
    a("s_mov_b64 exec, -1")
    a.label(f"L_{name}_noep")
    a("s_barrier")
    a.label(f"L_{name}_pub3")
    a("s_mul_i32 s40, s43, 57344")
    a("s_mul_i32 s34, s3, 896")
    a("s_add_u32 s40, s40, s34")
    a(f"s_add_u32 s40, s40, {PART_OFF}")
    a("s_waitcnt vmcnt(0)")
    a("s_barrier")
    poll_group(a, name, "s3", FL3_OFF)
    a("s_barrier")
    a.stamp(17)
    a.vm = []
    R, SM = 32, 16
    a("s_mov_b32 exec_hi, 0xffffff")
    for p in range(8):
        a.vmem(f"buffer_load_dwordx4 {vr(R+4*p,4)}, v{VL16}, s[28:31], s40 offen sc1", f"p{p}")
        if p < 7:
            a("s_add_u32 s40, s40, 7168")
    a(f"s_mov_b32 s34, {f32hex(LN2)}")
    for p in range(8):
        a.wait(vm=f"p{p}")
        for t in range(4):
            if p == 0:
                a(f"v_lshlrev_b32 v{SM+2*t}, 16, v{R+t}")
                a(f"v_and_b32 v{SM+2*t+1}, 0xffff0000, v{R+t}")
            else:
                a(f"v_lshlrev_b32 v{SM+8+2*t}, 16, v{R+4*p+t}")
                a(f"v_and_b32 v{SM+8+2*t+1}, 0xffff0000, v{R+4*p+t}")
        if p > 0:
            for t in range(4):
                a(f"v_pk_add_f32 {vr(SM+2*t,2)}, {vr(SM+2*t,2)}, {vr(SM+8+2*t,2)}")
    for e in range(8):
        a(f"v_fmac_f32 v{el(e)}, s34, v{SM+e}")
    for u in range(4):
        a(f"v_cvt_pk_bf16_f32 v{SM+u}, v{el(2*u)}, v{el(2*u+1)}")
    a(f"buffer_store_dwordx4 {vr(SM,4)}, v0, s[24:27], s44 offen")
    a.stamp(18)


def gen_pk(name):
    a = Asm()
    a("s_cmp_ge_u32 s2, 256")
    a(f"s_cbranch_scc1 L_{name}_end")
    a.stamp(0)
    a("s_load_dwordx4 s[4:7], s[0:1], 0")
    a("s_load_dwordx4 s[8:11], s[0:1], 16")
    a("s_load_dwordx2 s[12:13], s[0:1], 32")
    a("s_load_dwordx4 s[40:43], s[0:1], 48")
    a("s_load_dwordx4 s[44:47], s[0:1], 64")
    a("s_load_dwordx2 s[14:15], s[0:1], 88")
    a("v_lshrrev_b32 v2, 6, v0")
    a("v_and_b32 v1, 63, v0")
    a("v_readfirstlane_b32 s3, v2")
    phase_a(a, name)
    sync1(a, name)
    attention(a, name)
    epilogue(a, name)
    ffn(a, name)
    a.end()
    a.label(f"L_{name}_end")
    a("s_endpgm")
    slow_path(a, name)
    return a.text(), kernel_desc(name, 256, 64)
```

```python
import math
S, D, H, DH, F = 2048, 448, 16, 28, 1792
QF_OFF   = 0x000000
KVF_OFF  = 0x200000
FL1_OFF  = 0x1C8000
NREP     = 1
FL2_OFF  = 0x248000
FL3_OFF  = 0x250000
EP_OFF   = 0x258000
B1F_OFF  = 0x25A000
WOF_OFF  = 0x260000
W1F_OFF  = 0x2D0000
W2F_OFF  = 0x460000
XN2F_OFF = 0x600000
PART_OFF = 0x800000
WS_USED  = 0x1600000
PROF_OFF = 0x1600000
WS_SIZE  = 0x1800000
X_BYTES  = S * D * 2
WQ_BYTES = D * D * 2
WKV_BYTES = D * DH * 2
W1_BYTES = D * F * 2
B1_BYTES = F * 2
LOG2E = math.log2(math.e)
LN2 = math.log(2.0)
QSCALE = LOG2E / math.sqrt(DH)
EPS = 1e-5
M_LIMIT = 48.0
NAME = "sequential_preLN__grouped_kv_mqa__dense_activation_mish__prompt"
```

```python
import sys, os
sys.path.insert(0, os.path.dirname(__file__))
from playout import *
import asmlib
import pk

def build(path, prof=False):
    asmlib.PROF.update(on=prof if prof == "dbg" else bool(prof), cyc=(prof == "cyc"), kidx=0, off=PROF_OFF, n=20, base=56)
    ref = open(f"cdna_kernels/{NAME}.s.ref").read().split("\n")
    head = [l for l in ref if l.startswith(";") and "@launch" not in l and "Override" not in l and "grid=ceil" not in l]
    kn = NAME + "_kernel"
    out = list(head)
    out.append(f"; @launch grid=(256,1,1) block=(512,1,1) lds={pk.PK_LDS}")
    out.append('.amdgcn_target "amdgcn-amd-amdhsa--gfx950"')
    out.append(".text")
    body, desc = pk.gen_pk("pk")
    out.append(asmlib.kernel_header(kn) + body)
    out.append('.section .rodata,"a"')
    out.append(desc.replace(".amdhsa_kernel pk", f".amdhsa_kernel {kn}"))
    open(path, "w").write("\n".join(out))

if __name__ == "__main__":
    if len(sys.argv) > 2:
        build(sys.argv[1], prof={"prof": True, "cyc": "cyc", "dbg": "dbg"}.get(sys.argv[2], False))
    else:
        build("pk.s")
        build("pk_prof.s", prof=True)
        build("pk_cyc.s", prof="cyc")
```

```python
import os
DBG = set(int(t) for t in os.environ.get("PKDBG", "").split(",") if t)
PROF = {"on": False, "kidx": 0, "off": 0x1060000, "n": 12, "base": 64}

class Asm:
    def dstamp(self, i):
        if i in DBG:
            self.stamp(i, True)

    def stamp(self, i, dbg=False):
        if i in DBG and not dbg:
            return
        if PROF["on"]:
            B = PROF["base"]
            self(f"{'s_memtime' if PROF.get('cyc') else 's_memrealtime'} s[{B+2*i}:{B+1+2*i}]")
            if i == 0:
                self("s_memtime s[96:97]")
                for j in range(1, PROF["n"]):
                    self(f"s_mov_b32 s{B+2*j}, 0")

    def cstamp(self, i):
        if PROF["on"]:
            B = PROF["base"]
            self(f"s_memtime s[{B+2*i}:{B+1+2*i}]")

    def end(self):
        if PROF["on"]:
            B, N = PROF["base"], PROF["n"]
            rec = 64 if N <= 14 else 128
            self("s_waitcnt vmcnt(0)")
            self(f"{'s_memtime' if PROF.get('cyc') else 's_memrealtime'} s[{B+2*(N-1)}:{B+1+2*(N-1)}]")
            self("s_memtime s[98:99]")
            self("s_mov_b64 exec, 1")
            self("s_lshl_b32 s100, s2, 3")
            self("s_add_u32 s100, s100, s3")
            self(f"s_mul_i32 s100, s100, {rec}")
            self(f"s_add_u32 s100, s100, {PROF['off'] + PROF['kidx'] * 512 * 8 * rec}")
            self("v_mov_b32 v1, 0")
            self("s_waitcnt lgkmcnt(0)")
            self("s_sub_u32 s98, s98, s96")
            for i in range(N):
                self(f"v_mov_b32 v0, s{B+2*i}")
                self(f"buffer_store_dword v0, v1, s[28:31], s100 offen offset:{4*i}")
            self("v_mov_b32 v0, s98")
            self(f"buffer_store_dword v0, v1, s[28:31], s100 offen offset:{4*N}")
            self("s_getreg_b32 s98, hwreg(HW_REG_XCC_ID)")
            self("v_mov_b32 v0, s98")
            self(f"buffer_store_dword v0, v1, s[28:31], s100 offen offset:{4*N+4}")
        self("s_endpgm")

    def __init__(self):
        self.lines = []
        self.vm = []
        self.lg = []

    def __call__(self, s):
        for l in s.split("\n"):
            l = l.strip()
            if l:
                self.lines.append(("" if l.endswith(":") else "  ") + l)

    def label(self, name):
        self.lines.append(name + ":")

    def comment(self, s):
        self.lines.append("  ; " + s)

    def vmem(self, s, tag):
        self(s)
        self.vm.append(tag)

    def lds(self, s, tag):
        self(s)
        self.lg.append(tag)

    def _need(self, q, tags):
        if isinstance(tags, str):
            tags = [tags]
        last = -1
        for i, t in enumerate(q):
            if t in tags:
                last = i
        return last

    def wait(self, vm=None, lg=None):
        parts = []
        if vm is not None:
            if vm == "all":
                last = len(self.vm) - 1
            else:
                last = self._need(self.vm, vm)
            if last >= 0:
                n = len(self.vm) - 1 - last
                assert n <= 63
                parts.append(f"vmcnt({n})")
                self.vm = self.vm[last + 1:]
        if lg is not None:
            if lg == "all":
                last = len(self.lg) - 1
            else:
                last = self._need(self.lg, lg)
            if last >= 0:
                n = len(self.lg) - 1 - last
                n = min(n, 15)
                parts.append(f"lgkmcnt({n})")
                self.lg = self.lg[len(self.lg) - n:] if n else []
        if parts:
            self("s_waitcnt " + " ".join(parts))

    def srd(self, d, lo, hi, size):
        self(f"s_mov_b32 s{d}, s{lo}")
        self(f"s_mov_b32 s{d+1}, s{hi}")
        self(f"s_mov_b32 s{d+2}, {size}")
        self(f"s_mov_b32 s{d+3}, 0x20000")

    def text(self):
        return "\n".join(self.lines) + "\n"


def vr(a, n):
    return f"v[{a}:{a+n-1}]" if n > 1 else f"v{a}"

def ar(a, n):
    return f"a[{a}:{a+n-1}]" if n > 1 else f"a{a}"

def sr(a, n):
    return f"s[{a}:{a+n-1}]" if n > 1 else f"s{a}"

def f32hex(x):
    import struct
    return "0x%08x" % struct.unpack("<I", struct.pack("<f", x))[0]

def kernel_header(name):
    return f".globl {name}\n.p2align 8\n.type {name},@function\n{name}:\n"

def kernel_desc(name, vgpr, sgpr, accum=None):
    if PROF["on"]:
        sgpr = 102
    if accum is None:
        accum = (vgpr + 3) // 4 * 4
    return f""".p2align 6
.amdhsa_kernel {name}
  .amdhsa_next_free_vgpr {vgpr}
  .amdhsa_next_free_sgpr {sgpr}
  .amdhsa_accum_offset {accum}
  .amdhsa_group_segment_fixed_size 0
  .amdhsa_kernarg_size 96
  .amdhsa_user_sgpr_count 2
  .amdhsa_user_sgpr_kernarg_segment_ptr 1
  .amdhsa_system_sgpr_workgroup_id_x 1
.end_amdhsa_kernel
"""


def inst_size(l):
    import re
    l = l.strip()
    if not l or l.endswith(":") or l.startswith(";") or l.startswith("."):
        return 0
    op = l.split()[0]
    if op.startswith(("buffer_", "ds_", "v_mfma", "s_load", "s_mem", "global_", "v_pk_", "v_cvt_pk", "v_perm", "v_fma_", "v_max3",
                      "v_lshl_add", "v_lshl_or", "v_and_or", "v_add3", "v_bfe", "v_mul_lo", "v_mad", "v_readlane", "v_writelane",
                      "v_accvgpr", "v_dot2", "v_lshrrev_b64", "v_min3", "v_med3", "v_alignbit", "v_add_lshl", "v_xad", "v_or3")):
        return 8
    if op.endswith(("_e64", "_dpp", "_sdwa")):
        return 8
    args = l[len(op):]
    lit = False
    for t in re.findall(r"(?<![\w\[:])-?(?:0x[0-9a-fA-F]+|\d+\.\d+|\d+)(?![\w\]:])", args):
        if op.startswith(("s_waitcnt", "s_nop", "s_setprio", "s_sleep", "s_movk", "s_cbranch", "s_branch", "s_getreg")):
            break
        if "." in t and not t.startswith("0x"):
            continue
        v = int(t, 0)
        if not -16 <= v <= 64:
            lit = True
    if op.startswith("v_cmp") and not args.strip().startswith("vcc"):
        return 8
    if op.startswith("v_cndmask") and not re.match(r"\s*v\d+, [^,]+, v\d+, vcc$", args):
        return 8
    return 8 if lit else 4


def align8(lines, start_off=0):
    out = list(lines)
    off = start_off
    last4 = None
    for i, l in enumerate(out):
        n = inst_size(l)
        if n == 8 and off % 8 == 4 and last4 is not None:
            op = out[last4].split()[0]
            out[last4] = out[last4].replace(op, op + "_e64", 1)
            off += 4
        if n == 8:
            last4 = None
        elif n == 4 and l.strip().startswith(("v_exp_f32 ", "v_rcp_f32 ", "v_mul_f32 ", "v_add_f32 ", "v_mov_b32 ")):
            last4 = i
        off += n
    return out
```

```python
import os, math
from asmlib import *
from playout import *
from k1 import norm2_allhalves
from k2 import wave_allreduce

OPT = set(os.environ.get("PKOPT", "").split(","))

XN_RT = 56 * 528
WQ_L = 2 * XN_RT
WKV_L = WQ_L + 448 * 128
OB_L = 131072
TRASH_L = OB_L + 14336
LX_L = 147456
KM_L = LX_L + 2048
ST_L = KM_L + 64
B1_L = ST_L + 512
PK_LDS = B1_L + 1024
RED_ROW = 452 * 4
RED_PART = 8 * RED_ROW
XN2_L = 0
ACT_L = 57344

XR = 4
Q, O, SB, P, KF, VF = 8, 16, 32, 64, 72, 88
VL16, VKV0, VKV1, MRUN = 104, 105, 106, 107
T0 = 108
WPRE, NPRE, NSTG = 112, 36, 8
WLATE, WSTG = 36, 56
ACC2, BF = 8, 88
SLEEP = int(os.environ.get("PKSLEEP", "2"))
SPIN = 1 << 20
SPIN2 = 1 << 18


XSCALE = math.sqrt(QSCALE)


def ln_rows(a, X, Fv, T):
    a("s_mov_b32 s34, 0x3f803f80")
    for j in range(28):
        c = "0" if j < 2 else None
        a(f"v_dot2_f32_bf16 v{T+j%2}, v{X+j}, s34, {c or f'v{T+j%2}'}")
        a(f"v_dot2_f32_bf16 v{T+2+j%2}, v{X+j}, v{X+j}, {c or f'v{T+2+j%2}'}")
    a("s_nop 2")
    a(f"v_add_f32 v{T}, v{T}, v{T+1}")
    a(f"v_add_f32 v{T+2}, v{T+2}, v{T+3}")
    for ctl in ("quad_perm:[1,0,3,2]", "quad_perm:[2,3,0,1]", "row_half_mirror"):
        a("s_nop 0")
        a(f"v_add_f32_dpp v{T}, v{T}, v{T} {ctl} row_mask:0xf bank_mask:0xf")
        a(f"v_add_f32_dpp v{T+2}, v{T+2}, v{T+2} {ctl} row_mask:0xf bank_mask:0xf")
    a(f"v_mul_f32 v{T}, {f32hex(-1.0/448)}, v{T}")
    a(f"v_mul_f32 v{T+2}, {f32hex(1.0/448)}, v{T+2}")
    a(f"v_fma_f32 v{T+2}, -v{T}, v{T}, v{T+2}")
    a(f"v_max_f32 v{T+2}, 0, v{T+2}")
    a(f"v_add_f32 v{T+2}, {f32hex(EPS)}, v{T+2}")
    a(f"v_rsq_f32 v{T+4}, v{T+2}")
    def unpack(j):
        f = Fv + 2 * (j % 4)
        a(f"v_lshlrev_b32 v{f}, 16, v{X+j}")
        a(f"v_and_b32 v{f+1}, 0xffff0000, v{X+j}")
    unpack(0)
    a(f"v_mul_f32 v{T+4}, {f32hex(XSCALE)}, v{T+4}")
    unpack(1)
    a(f"v_mul_f32 v{T+6}, v{T}, v{T+4}")
    for j in range(28):
        f = Fv + 2 * (j % 4)
        a(f"v_pk_fma_f32 {vr(f,2)}, {vr(f,2)}, {vr(T+4,2)}, {vr(T+6,2)} op_sel_hi:[1,0,0]")
        if j + 2 < 28:
            unpack(j + 2)
        a(f"v_cvt_pk_bf16_f32 v{X+j}, v{f}, v{f+1}")


def proj_tile(a, wstep, whalf, swap, ACC, VW, VX, FR):
    DEPTH = 5
    def issue(ks):
        b = FR + 8 * (ks % DEPTH)
        a.lds(f"ds_read_b64_tr_b16 {vr(b,2)}, v{VW} offset:{ks*wstep}", f"f{ks}")
        a.lds(f"ds_read_b64_tr_b16 {vr(b+2,2)}, v{VW} offset:{ks*wstep+whalf}", f"f{ks}")
        a.lds(f"ds_read_b128 {vr(b+4,4)}, v{VX} offset:{ks*1056}", f"f{ks}")
    a.lg = []
    for ks in range(DEPTH):
        issue(ks)
    for ks in range(28):
        b = FR + 8 * (ks % DEPTH)
        a.wait(lg=f"f{ks}")
        c = "0" if ks == 0 else vr(ACC, 16)
        if swap:
            a(f"v_mfma_f32_32x32x16_bf16 {vr(ACC,16)}, {vr(b+4,4)}, {vr(b,4)}, {c}")
        else:
            a(f"v_mfma_f32_32x32x16_bf16 {vr(ACC,16)}, {vr(b,4)}, {vr(b+4,4)}, {c}")
        if ks + DEPTH < 28:
            issue(ks + DEPTH)
    a("s_nop 11")


def wreg(f):
    if f < NPRE:
        return WPRE + 4 * f
    if f < NPRE + NSTG:
        return WSTG + 4 * (f - NPRE)
    return WLATE + 4 * (f - NPRE - NSTG)


def xn2_address(a, vdst, vt, sdst):
    a("s_mul_i32 s34, s3, 3584")
    a(f"v_lshrrev_b32 v{vt}, 3, v1")
    a(f"v_lshl_add_u32 v{vt}, v{vt}, 9, s34")
    a(f"v_and_b32 v{vdst}, 7, v1")
    a(f"v_lshl_add_u32 v{vdst}, v{vdst}, 4, v{vt}")
    a("s_mul_i32 s34, s32, 57344")
    a(f"s_lshr_b32 s{sdst}, s33, 2")
    a(f"s_mul_i32 s{sdst}, s{sdst}, 28672")
    a(f"s_add_u32 s{sdst}, s{sdst}, s34")
    a("s_and_b32 s34, s33, 3")
    a("s_lshl_b32 s34, s34, 7")
    a(f"s_add_u32 s{sdst}, s{sdst}, s34")
    a(f"s_add_u32 s{sdst}, s{sdst}, {XN2F_OFF}")


PR, PO, PD = 108, 124, 144


def prep_start(a, name):
    R = PR

    def go(lo, size):
        a("s_add_u32 s17, s16, s36")
        a("s_add_u32 s18, s17, s36")
        a("s_add_u32 s19, s18, s36")
        a("s_mov_b32 s55, 0x20000")
        a(f"s_mov_b32 s54, {size}")
        a(f"s_mov_b32 s52, s{lo}")
        a(f"s_mov_b32 s53, s{lo+1}")

    a("s_lshl_b32 s51, s2, 2")
    a("s_add_u32 s51, s51, s3")
    a("s_sub_u32 s51, s51, 4")
    a("v_and_b32 v2, 31, v1")
    a("v_lshrrev_b32 v3, 5, v1")
    a("s_movk_i32 s36, 3584")
    a("s_cmp_ge_u32 s51, 784")
    a(f"s_cbranch_scc1 L_{name}_pwo")
    a("s_cmp_ge_u32 s51, 392")
    a(f"s_cbranch_scc1 L_{name}_pw2")
    a("s_mul_i32 s34, s51, 4682")
    a("s_lshr_b32 s34, s34, 16")
    a("s_mul_i32 s35, s34, 14")
    a("s_sub_u32 s35, s51, s35")
    a(f"s_mul_i32 s16, s34, {16*3584}")
    a("s_lshl_b32 s37, s35, 8")
    a("s_add_u32 s16, s16, s37")
    a(f"v_mul_u32_u24 v4, {8*3584}, v3")
    a("v_lshl_add_u32 v4, v2, 3, v4")
    a(f"v_add_u32 v5, {4*3584}, v4")
    go(40, W1_BYTES)
    for t in range(8):
        a(f"buffer_load_dwordx2 {vr(R+2*t,2)}, v{4 + t//4}, s[52:55], s{16 + t%4} offen")
    a(f"s_mul_i32 s37, s35, {4*28672}")
    a("s_lshl_b32 s36, s34, 10")
    a("s_add_u32 s37, s37, s36")
    a(f"s_add_u32 s37, s37, {W1F_OFF}")
    a(f"v_add_u32 v{PD}, s37, v7")
    for c in range(1, 4):
        a(f"v_add_u32 v{PD+c}, 28672, v{PD+c-1}")
    a("s_mov_b32 s50, 1")
    a("s_waitcnt vmcnt(8)")
    a(f"s_branch L_{name}_pdone")
    a.label(f"L_{name}_pw2")
    a("s_sub_u32 s51, s51, 392")
    a("s_mul_i32 s34, s51, 9363")
    a("s_lshr_b32 s34, s34, 16")
    a("s_mul_i32 s35, s34, 7")
    a("s_sub_u32 s35, s51, s35")
    a("s_lshr_b32 s38, s34, 2")
    a("s_lshl_b32 s38, s38, 7")
    a("s_and_b32 s37, s34, 3")
    a("s_add_u32 s38, s38, s37")
    a("s_mul_i32 s16, s38, 896")
    a("s_lshl_b32 s38, s35, 7")
    a("s_add_u32 s16, s16, s38")
    a(f"v_mul_u32_u24 v4, {4*3584}, v3")
    a("v_lshl_add_u32 v4, v2, 2, v4")
    a(f"v_add_u32 v5, {8*3584}, v4")
    a(f"v_add_u32 v2, {16*3584}, v4")
    a(f"v_add_u32 v3, {24*3584}, v4")
    go(44, W1_BYTES)
    va = [4, 5, 2, 3]
    for t in range(16):
        a(f"buffer_load_dword v{R+t}, v{va[t//4]}, s[52:55], s{16 + t%4} offen")
    a("s_mul_i32 s36, s34, 147")
    a("s_lshr_b32 s36, s36, 10")
    a("s_mul_i32 s37, s36, 7")
    a("s_sub_u32 s38, s34, s37")
    a("s_add_u32 s37, s37, s35")
    a("s_mul_i32 s37, s37, 7")
    a("s_add_u32 s37, s37, s38")
    a("s_lshl_b32 s37, s37, 12")
    a(f"s_add_u32 s37, s37, {W2F_OFF}")
    a(f"v_add_u32 v{PD}, s37, v7")
    a("s_mov_b32 s50, 2")
    a("s_waitcnt vmcnt(16)")
    a(f"s_branch L_{name}_pdone")
    a.label(f"L_{name}_pwo")
    a("s_cmp_ge_u32 s51, 896")
    a(f"s_cbranch_scc1 L_{name}_pnone")
    a("s_cmp_ge_u32 s51, 882")
    a(f"s_cbranch_scc1 L_{name}_pbias")
    T = PO
    a("v_and_b32 v2, 15, v1")
    a("v_lshrrev_b32 v3, 4, v1")
    a("s_sub_u32 s51, s51, 784")
    a("s_mul_i32 s34, s51, 147")
    a("s_lshr_b32 s34, s34, 10")
    a("s_mul_i32 s35, s34, 7")
    a("s_sub_u32 s35, s51, s35")
    a("s_lshl_b32 s36, s34, 2")
    a(f"v_add_u32 v{T}, s36, v3")
    a(f"v_mul_u32_u24 v{T+1}, 147, v{T}")
    a(f"v_lshrrev_b32 v{T+1}, 10, v{T+1}")
    a(f"v_mul_u32_u24 v{T+2}, 7, v{T+1}")
    a(f"v_sub_u32 v{T}, v{T}, v{T+2}")
    offA = [0, 16, 4, 28, 44, 32, 20]
    tab = sum(o << (8 * i) for i, o in enumerate(offA))
    a(f"s_mov_b32 s36, {tab & 0xffffffff:#x}")
    a(f"s_mov_b32 s37, {tab >> 32:#x}")
    a(f"v_lshlrev_b32 v{T+2}, 3, v{T}")
    a(f"v_lshrrev_b64 v[{T+4}:{T+5}], v{T+2}, s[36:37]")
    a(f"v_and_b32 v{T+4}, 0xff, v{T+4}")
    a(f"v_mul_u32_u24 v{T+1}, 56, v{T+1}")
    a(f"v_add_u32 v{T+4}, v{T+4}, v{T+1}")
    a(f"v_cmp_eq_u32 vcc, 6, v{T}")
    a(f"v_mov_b32 v{T+2}, 28")
    a(f"v_mul_u32_u24 v4, 896, v{T+4}")
    a(f"v_cndmask_b32 v{T+2}, 8, v{T+2}, vcc")
    a("v_lshl_add_u32 v4, v2, 3, v4")
    a(f"v_mul_u32_u24 v{T+2}, 896, v{T+2}")
    a(f"v_add_u32 v5, v4, v{T+2}")
    a("s_lshl_b32 s16, s35, 7")
    a("s_movk_i32 s36, 896")
    go(12, WQ_BYTES)
    for t in range(8):
        a(f"buffer_load_dwordx2 {vr(R+2*t,2)}, v{4 + t//4}, s[52:55], s{16 + t%4} offen")
    a("s_cmp_ge_u32 s34, 7")
    a("s_cselect_b32 s38, 1, 0")
    a("s_mul_i32 s39, s38, 7")
    a("s_sub_u32 s39, s34, s39")
    a("s_mul_i32 s39, s39, 7")
    for c in range(4):
        a("s_lshl_b32 s34, s35, 2")
        a(f"s_add_u32 s34, s34, {c}")
        a("s_mul_i32 s36, s34, 147")
        a("s_lshr_b32 s36, s36, 10")
        a("s_mul_i32 s37, s36, 7")
        a("s_sub_u32 s34, s34, s37")
        a("s_lshl_b32 s36, s36, 1")
        a("s_add_u32 s36, s36, s38")
        a("s_mul_i32 s36, s36, 49")
        a("s_add_u32 s36, s36, s39")
        a("s_add_u32 s36, s36, s34")
        a("s_lshl_b32 s36, s36, 10")
        a(f"s_add_u32 s36, s36, {WOF_OFF}")
        a(f"v_add_u32 v{PD+c}, s36, v7")
    a("s_mov_b32 s50, 1")
    a("s_waitcnt vmcnt(8)")
    a(f"s_branch L_{name}_pdone")
    a.label(f"L_{name}_pbias")
    a("s_sub_u32 s51, s51, 882")
    a("v_lshrrev_b32 v2, 4, v1")
    a("v_bfe_u32 v3, v1, 3, 1")
    a("v_lshl_add_u32 v2, v3, 4, v2")
    a("v_bfe_u32 v3, v1, 1, 2")
    a("v_lshl_add_u32 v2, v3, 5, v2")
    a("v_and_b32 v3, 1, v1")
    a("v_lshl_add_u32 v2, v3, 3, v2")
    a("v_lshlrev_b32 v4, 1, v2")
    a("s_lshl_b32 s16, s51, 8")
    go(42, B1_BYTES)
    for t in range(2):
        a(f"buffer_load_ushort v{R+t}, v4, s[52:55], s16 offen offset:{8*t}")
    a("s_lshl_b32 s37, s51, 9")
    a(f"s_add_u32 s37, s37, {B1F_OFF}")
    a(f"v_lshl_add_u32 v{PD}, v1, 3, s37")
    a("s_mov_b32 s50, 3")
    a("s_waitcnt vmcnt(2)")
    a(f"s_branch L_{name}_pdone")
    a.label(f"L_{name}_pnone")
    a("s_mov_b32 s50, 0")
    a("s_waitcnt vmcnt(0)")
    a.label(f"L_{name}_pdone")


def prep_finish(a, name):
    R, OO = PR, PO
    a("s_mov_b32 s36, 0x05040100")
    a("s_mov_b32 s37, 0x07060302")
    a("s_waitcnt vmcnt(0)")
    a.stamp(3)
    a("s_cmp_eq_u32 s50, 0")
    a(f"s_cbranch_scc1 L_{name}_s1")
    a("s_cmp_eq_u32 s50, 2")
    a(f"s_cbranch_scc1 L_{name}_f2")
    a("s_cmp_eq_u32 s50, 3")
    a(f"s_cbranch_scc1 L_{name}_f3")
    for c in range(4):
        for u in range(4):
            a(f"v_perm_b32 v{OO+4*c+u}, v{R+2*(2*u+1)+c//2}, v{R+2*(2*u)+c//2}, s{36 + c%2}")
        a(f"buffer_store_dwordx4 {vr(OO+4*c,4)}, v{PD+c}, s[28:31], 0 offen sc1")
    a(f"s_branch L_{name}_s1")
    a.label(f"L_{name}_f3")
    a(f"s_mov_b32 s36, {f32hex(LOG2E)}")
    for t in range(2):
        a(f"v_lshlrev_b32 v{R+t}, 16, v{R+t}")
        a(f"v_mul_f32 v{R+t}, s36, v{R+t}")
    a(f"buffer_store_dwordx2 {vr(R,2)}, v{PD}, s[28:31], 0 offen sc1")
    a(f"s_branch L_{name}_s1")
    a.label(f"L_{name}_f2")
    for m in range(2):
        for c in range(2):
            o = OO + 8 * m + 4 * c
            for u in range(4):
                a(f"v_perm_b32 v{o+u}, v{R+8*m+2*u+1}, v{R+8*m+2*u}, s{36 + c}")
            a(f"buffer_store_dwordx4 {vr(o,4)}, v{PD}, s[28:31], 0 offen offset:{2048*m+1024*c} sc1")
    a(f"s_branch L_{name}_s1")


VW, VX, VST, VL32 = 105, 106, 107, 108


def proj_addresses(a, name):
    a("v_lshrrev_b32 v2, 4, v1")
    a("v_and_b32 v3, 15, v1")
    a("v_lshrrev_b32 v4, 2, v3")
    a("v_and_b32 v3, 3, v3")
    a(f"v_lshrrev_b32 v{VST}, 1, v2")
    a(f"v_lshl_add_u32 v4, v{VST}, 3, v4")
    a("v_and_b32 v2, 1, v2")
    a("v_lshlrev_b32 v2, 5, v2")
    a("v_lshl_add_u32 v2, v3, 3, v2")
    a(f"v_and_b32 v{VL32}, 31, v1")
    a("v_lshrrev_b32 v3, 5, v1")
    a(f"v_mul_u32_u24 v{VX}, 528, v3")
    a(f"v_lshl_add_u32 v{VX}, v{VL32}, 4, v{VX}")
    a("v_cmp_lt_u32 vcc, 31, v1")
    a("s_lshr_b32 s36, s3, 1")
    a("s_and_b32 s37, s3, 1")
    a("s_cmp_eq_u32 s33, 7")
    a(f"s_cbranch_scc1 L_{name}_akv")
    a(f"s_mul_i32 s38, s36, {XN_RT}")
    a(f"v_add_u32 v{VX}, s38, v{VX}")
    a(f"v_lshrrev_b32 v{VST}, 1, v4")
    a(f"v_xor_b32 v{VST}, s37, v{VST}")
    a(f"v_and_b32 v{VST}, 1, v{VST}")
    a(f"v_lshl_add_u32 v2, v{VST}, 6, v2")
    a(f"v_lshl_add_u32 v{VW}, v4, 7, v2")
    a(f"v_add_u32 v{VW}, {WQ_L}, v{VW}")
    a("s_lshl_b32 s39, s32, 1")
    a("s_add_u32 s39, s39, s36")
    a(f"s_mul_i32 s39, s39, {4*7168}")
    a("s_lshl_b32 s36, s33, 1")
    a("s_add_u32 s36, s36, s37")
    a("s_lshl_b32 s36, s36, 9")
    a("s_add_u32 s39, s39, s36")
    a(f"v_lshrrev_b32 v2, 3, v{VL32}")
    a("v_mul_u32_u24 v2, 7168, v2")
    a(f"v_and_b32 v4, 7, v{VL32}")
    a("v_lshl_add_u32 v2, v4, 4, v2")
    a(f"v_lshl_add_u32 v{VST}, v3, 7, v2")
    a(f"s_branch L_{name}_adone")
    a.label(f"L_{name}_akv")
    a(f"s_mul_i32 s38, s37, {XN_RT}")
    a(f"v_add_u32 v{VX}, s38, v{VX}")
    a(f"v_mul_u32_u24 v{VW}, 56, v4")
    a(f"v_add_u32 v{VW}, v{VW}, v2")
    a("s_mul_i32 s38, s36, 28672")
    a(f"s_add_u32 s38, s38, {WQ_L}")
    a(f"v_add_u32 v{VW}, s38, v{VW}")
    a("s_lshl_b32 s39, s32, 1")
    a("s_add_u32 s39, s39, s37")
    a("s_lshl_b32 s39, s39, 12")
    a(f"s_add_u32 s39, s39, {KVF_OFF}")
    a(f"v_lshlrev_b32 v{VST}, 4, v1")
    a.label(f"L_{name}_adone")


def tag_barrier(a):
    a("s_mul_i32 s48, s48, 0x9E3779B1")
    a("s_add_u32 s48, s48, 0x7F4A7C15")
    a("s_mov_b32 s49, 0")
    a("s_barrier")
    a.stamp(4)


def phase_a(a, name):
    X, Fv, T = 8, 64, 96
    ACC, FR = 8, 40
    a("s_and_b32 s32, s2, 31")
    a("s_lshr_b32 s33, s2, 5")
    a("v_lshlrev_b32 v7, 4, v1")
    a("v_lshlrev_b32 v6, 7, v1")
    a("s_lshr_b32 s36, s2, 3")
    if "nocode" not in OPT:
        a("s_getpc_b64 s[20:21]")
        a.label(f"L_{name}_pc")
        a(f"s_mov_b32 s22, L_{name}_last-L_{name}_pc")
        a("s_mov_b32 s23, 0x20000")
        a("s_lshl_b32 s37, s36, 3")
        a("s_add_u32 s37, s37, s3")
        a("s_lshl_b32 s37, s37, 8")
        a("s_mov_b64 exec, 3")
        a("buffer_load_dword v255, v6, s[20:23], s37 offen")
        a("s_mov_b64 exec, -1")
    a(f"s_mov_b32 s49, {EP_OFF}")
    a("s_cmp_ge_u32 s3, 4")
    a(f"s_cbranch_scc1 L_{name}_ld")
    a("v_lshrrev_b32 v3, 3, v1")
    a("v_and_b32 v4, 7, v1")
    a("v_mul_u32_u24 v5, 896, v3")
    a("v_lshl_add_u32 v5, v4, 4, v5")
    a("s_mul_i32 s35, s32, 57344")
    a(f"s_mul_i32 s34, s3, {16*896}")
    a("s_add_u32 s35, s35, s34")
    a(f"s_add_u32 s34, s35, {8*896}")
    a("s_lshl_b32 s37, s36, 1")
    a("s_add_u32 s37, s37, s3")
    a(f"s_mul_i32 s37, s37, {49*128}")
    a("s_and_b32 s38, s36, 15")
    a(f"s_mul_i32 s38, s38, {13*128}")
    a("s_cmp_ge_u32 s3, 2")
    a("s_cselect_b32 s37, s38, s37")
    a(f"s_mov_b32 s22, {WQ_BYTES}")
    a(f"s_cselect_b32 s22, {WKV_BYTES}, s22")
    a("s_cselect_b32 s38, 0x1fff, -1")
    a("s_cselect_b32 s39, 0, 0x1ffff")
    a("s_lshl_b32 s50, s32, 3")
    a("s_add_u32 s50, s50, s33")
    a("s_mul_i32 s50, s50, 7168")
    a("s_cmp_eq_u32 s3, 3")
    a("s_cselect_b32 s37, s50, s37")
    a(f"s_cselect_b32 s22, {X_BYTES if 'noxt' not in OPT else 0}, s22")
    a("s_cselect_b32 s38, -1, s38")
    a("s_cselect_b32 s39, 0xffffff, s39")
    a("s_mov_b32 s23, 0x20000")
    a(f"s_mov_b32 s18, {X_BYTES}")
    a("s_mov_b32 s19, 0x20000")
    a("s_waitcnt lgkmcnt(0)")
    a.stamp(1)
    def xload():
        a("s_mov_b32 s16, s4")
        a("s_mov_b32 s17, s5")
        for h in range(2):
            for i in range(7):
                a(f"buffer_load_dwordx4 {vr(X+28*h+4*i,4)}, v5, s[16:19], s{35-h} offen offset:{128*i}")

    def touch():
        a("s_cmp_lt_u32 s36, 16")
        a("s_cselect_b32 s20, s8, s10")
        a("s_cselect_b32 s21, s9, s11")
        a("s_cmp_lt_u32 s3, 2")
        a("s_cselect_b32 s20, s6, s20")
        a("s_cselect_b32 s21, s7, s21")
        a("s_cmp_eq_u32 s3, 3")
        a("s_cselect_b32 s20, s4, s20")
        a("s_cselect_b32 s21, s5, s21")
        a("s_mov_b64 exec, s[38:39]")
        a("buffer_load_dword v254, v6, s[20:23], s37 offen")
        a("s_mov_b64 exec, -1")
    TL = 1 if "touchlast" in OPT else 0
    if TL:
        xload()
        touch()
    else:
        touch()
        xload()
    a(f"s_branch L_{name}_ln")

    a.label(f"L_{name}_ld")
    a("v_lshrrev_b32 v8, 3, v1")
    a("v_and_b32 v9, 7, v1")
    a("v_bfe_u32 v6, v1, 4, 1")
    a("v_lshl_add_u32 v6, v6, 2, v9")
    a("v_and_b32 v6, 7, v6")
    a("v_mul_u32_u24 v10, 896, v8")
    a("v_lshl_add_u32 v6, v6, 4, v10")
    a("s_sub_u32 s51, s3, 4")
    a(f"s_mul_i32 s34, s51, {14*7168}")
    a("s_lshl_b32 s35, s33, 7")
    a("s_add_u32 s34, s34, s35")
    a("s_movk_i32 s36, 7168")
    a(f"s_mul_i32 s35, s51, {14*1024}")
    a(f"s_add_u32 s35, s35, {WQ_L}")
    for c in range(4):
        a(f"v_mov_b32 v{PD+c}, -1")
    a("s_waitcnt lgkmcnt(0)")
    a.stamp(1)
    a.srd(28, 14, 15, WS_SIZE)
    a("s_load_dword s48, s[14:15], s49")
    a.srd(20, 6, 7, WQ_BYTES)
    a("s_cmp_lg_u32 s33, 7")
    a(f"s_cbranch_scc1 L_{name}_wsel")
    a("s_cmp_lt_u32 s3, 6")
    a("s_cselect_b32 s20, s8, s10")
    a("s_cselect_b32 s21, s9, s11")
    a(f"s_mov_b32 s22, {WKV_BYTES}")
    a("s_and_b32 s34, s3, 1")
    a(f"s_mul_i32 s34, s34, {14*1024}")
    a("s_movk_i32 s36, 1024")
    a("v_mov_b32 v6, v7")
    a.label(f"L_{name}_wsel")
    a.dstamp(10)
    a("s_barrier")
    a.dstamp(11)
    for i in range(14):
        a("s_mov_b32 m0, s35")
        a("s_add_u32 s35, s35, 1024")
        a("buffer_load_dwordx4 v6, s[20:23], s34 offen lds")
        a("s_add_u32 s34, s34, s36")
    a.stamp(2)
    prep_start(a, name)
    a("s_waitcnt lgkmcnt(0)")
    a.dstamp(12)
    tag_barrier(a)
    prep_finish(a, name)

    a.label(f"L_{name}_ln")
    a("s_load_dword s48, s[14:15], s49")
    a.srd(28, 14, 15, WS_SIZE)
    a.dstamp(10)
    a("s_barrier")
    a.dstamp(11)
    a("v_lshlrev_b32 v2, 9, v3")
    a("v_lshl_add_u32 v2, v4, 4, v2")
    for r in range(4):
        a(f"v_mov_b32 v{140+r}, -1")
    a("s_mul_i32 s38, s32, 57344")
    a("s_lshr_b32 s39, s33, 2")
    a("s_mul_i32 s39, s39, 28672")
    a("s_add_u32 s38, s38, s39")
    a("s_and_b32 s39, s33, 3")
    a("s_lshl_b32 s39, s39, 7")
    a("s_add_u32 s38, s38, s39")
    a(f"s_add_u32 s38, s38, {XN2F_OFF}")
    a("s_mul_i32 s39, s3, 7168")
    a("s_add_u32 s38, s38, s39")
    a("s_add_u32 s39, s38, 3584")
    a("s_mov_b32 exec_hi, 0xffffff")
    a("buffer_store_dwordx4 v[140:143], v2, s[28:31], s38 offen sc1")
    a("buffer_store_dwordx4 v[140:143], v2, s[28:31], s39 offen sc1")
    a("s_mov_b32 exec_hi, -1")
    a("s_lshr_b32 s36, s3, 1")
    a(f"s_mul_i32 s36, s36, {XN_RT}")
    a("s_and_b32 s37, s3, 1")
    a("s_lshl_b32 s37, s37, 8")
    a("s_add_u32 s36, s36, s37")
    a("v_mul_u32_u24 v104, 528, v4")
    a("v_lshl_add_u32 v104, v3, 4, v104")
    a("v_add_u32 v104, s36, v104")
    proj_addresses(a, name)
    for h in range(2):
        if h == 1:
            a.dstamp(12)
        a(f"s_waitcnt vmcnt({9+TL-7*h})")
        if h == 0:
            a.stamp(2)
        else:
            a.dstamp(13)
        ln_rows(a, X + 28 * h, Fv, T)
        for i in range(7):
            a(f"ds_write_b128 v104, {vr(X+28*h+4*i,4)} offset:{4224*i+128*h}")
    a.stamp(3)
    a("s_waitcnt lgkmcnt(0)")
    tag_barrier(a)
    a("s_cmp_eq_u32 s33, 7")
    a(f"s_cbranch_scc1 L_{name}_kv")
    proj_tile(a, 2048, 512, False, ACC, VW, VX, FR)
    for u in range(8):
        a(f"v_cvt_pk_bf16_f32 v{FR+u}, v{ACC+2*u}, v{ACC+2*u+1}")
    a("s_nop 1")
    for u in (0, 1, 4, 5):
        a(f"v_permlane32_swap_b32 v{FR+u}, v{FR+u+2}")
    a("s_nop 1")
    a(f"buffer_store_dwordx4 {vr(FR,4)}, v{VST}, s[28:31], s39 offen sc1")
    a(f"buffer_store_dwordx4 {vr(FR+4,4)}, v{VST}, s[28:31], s39 offen offset:256 sc1")
    a(f"s_branch L_{name}_s1")
    a.label(f"L_{name}_kv")
    a("s_cmp_ge_u32 s3, 2")
    a(f"s_cbranch_scc1 L_{name}_v")
    proj_tile(a, 896, 224, False, ACC, VW, VX, FR)
    for j in range(13, 16):
        a(f"v_cndmask_b32 v{ACC+j}, v{ACC+j}, 0, vcc")
    a(f"v_cndmask_b32 v{FR+8}, v{ACC+12}, 1.0, vcc")
    a(f"v_cndmask_b32 v{ACC+12}, v{ACC+12}, 0, vcc")
    for u in range(8):
        a(f"v_cvt_pk_bf16_f32 v{FR+u}, v{FR+8 if u == 6 else ACC+2*u}, v{ACC+2*u+1}")
    a(f"buffer_store_dwordx4 {vr(FR,4)}, v{VST}, s[28:31], s39 offen sc1")
    a(f"buffer_store_dwordx4 {vr(FR+4,4)}, v{VST}, s[28:31], s39 offen offset:1024 sc1")
    norm2_allhalves(a, ACC, T)
    for ctl in ("quad_perm:[1,0,3,2]", "quad_perm:[2,3,0,1]", "row_half_mirror", "row_mirror"):
        a("s_nop 1")
        a(f"v_max_f32_dpp v{T}, v{T}, v{T} {ctl} row_mask:0xf bank_mask:0xf")
    a("s_nop 1")
    a(f"v_readlane_b32 s36, v{T}, 0")
    a(f"v_readlane_b32 s38, v{T}, 16")
    a("s_max_u32 s49, s36, s38")
    a(f"s_branch L_{name}_s1")
    a.label(f"L_{name}_v")
    a(f"v_cmp_eq_u32 vcc, 28, v{VL32}")
    a("v_mov_b32 v6, 0x3f803f80")
    a("s_nop 0")
    a("v_cndmask_b32 v6, 0, v6, vcc")
    a(f"v_cmp_gt_u32 vcc, 28, v{VL32}")
    proj_tile(a, 896, 224, True, ACC, VW, VX, FR)
    for u in range(8):
        a(f"v_cvt_pk_bf16_f32 v{FR+u}, v{ACC+2*u}, v{ACC+2*u+1}")
    for u in range(8):
        a(f"v_cndmask_b32 v{FR+u}, v6, v{FR+u}, vcc")
    a(f"buffer_store_dwordx4 {vr(FR,4)}, v{VST}, s[28:31], s39 offen offset:2048 sc1")
    a(f"buffer_store_dwordx4 {vr(FR+4,4)}, v{VST}, s[28:31], s39 offen offset:3072 sc1")


def sync1(a, name):
    a.label(f"L_{name}_s1")
    a.srd(16, 4, 5, X_BYTES)
    a.srd(24, 46, 47, X_BYTES)
    a.srd(52, 14, 15, WS_SIZE)
    a("s_cmp_eq_u32 s3, 7")
    a("s_cselect_b32 s54, 0, s54")
    a(f"v_lshlrev_b32 v{VL16}, 4, v1")
    a("s_and_b32 s20, s3, 3")
    a("s_lshr_b32 s21, s3, 2")
    a("s_lshl_b32 s34, s21, 14")
    a(f"v_add_u32 v{VKV0}, s34, v{VL16}")
    a(f"v_add_u32 v{VKV1}, 0x10000, v{VKV0}")
    a("s_lshl_b32 s40, s21, 5")
    a("s_add_u32 s40, s40, s20")
    a("s_lshl_b32 s40, s40, 12")
    a(f"s_add_u32 s40, s40, {KVF_OFF}")
    a("s_lshl_b32 s41, s3, 12")
    a("s_lshl_b32 s43, s32, 3")
    a("s_add_u32 s43, s43, s33")
    a("s_mul_i32 s42, s3, 50176")
    a(f"s_add_u32 s42, s42, {WOF_OFF}")
    a(f"s_add_u32 s22, s42, {NPRE*1024}")
    a(f"s_mul_i32 s44, s43, {8*896}")
    a("s_mul_i32 s34, s3, 112")
    a("s_add_u32 s44, s44, s34")
    a("v_and_b32 v2, 7, v1")
    a("v_mul_u32_u24 v2, 896, v2")
    a("v_lshrrev_b32 v3, 3, v1")
    a("v_lshl_add_u32 v0, v3, 4, v2")
    for r in range(16):
        a(f"v_mov_b32 v{O+r}, 0")
    a(f"v_mov_b32 v{MRUN}, 0")
    a("v_bfe_u32 v2, v1, 3, 2")
    a("s_lshl_b32 s34, s20, 2")
    a("v_add_u32 v2, s34, v2")
    a("v_mul_u32_u24 v2, 7, v2")
    a("v_lshrrev_b32 v3, 5, v1")
    a("v_add_u32 v2, v2, v3")
    a("v_lshrrev_b32 v3, 1, v2")
    a("v_and_b32 v2, 1, v2")
    a("v_lshlrev_b32 v2, 3, v2")
    a("v_lshl_add_u32 v3, v3, 7, v2")
    a("v_and_b32 v2, 7, v1")
    a("v_lshl_add_u32 v3, v2, 4, v3")
    a("v_mov_b32 v32, s48")
    a("v_mov_b32 v33, s49")
    a("v_lshrrev_b32 v2, 1, v1")
    a("v_and_b32 v42, 1, v1")
    a("v_lshlrev_b32 v42, 4, v42")
    a("v_lshl_add_u32 v43, v2, 12, v42")
    a("v_lshl_add_u32 v42, v2, 7, v42")
    a("v_mov_b32 v2, 0")
    a("s_lshl_b32 s37, s32, 7")
    a(f"s_add_u32 s37, s37, {FL1_OFF}")
    a(f"s_mov_b32 s36, {FL1_OFF + 224*128}")
    a(f"s_mov_b32 s38, {SPIN}")
    a(f"v_lshlrev_b32 v46, 2, v1")
    a(f"v_add_u32 v46, {ST_L}, v46")
    a.stamp(5)
    a("s_cmp_ge_u32 s3, 4")
    a(f"s_cbranch_scc1 L_{name}_s1done")
    a("s_lshl_b32 s34, s2, 7")
    a("s_lshl_b32 s35, s3, 3")
    a("s_add_u32 s34, s34, s35")
    a(f"s_add_u32 s34, s34, {FL1_OFF}")
    a("s_mov_b64 exec, 1")
    a("s_waitcnt vmcnt(0)")
    a.stamp(6)
    a("buffer_store_dwordx2 v[32:33], v2, s[28:31], s34 offen sc1")
    a("s_mov_b64 exec, -1")
    a("s_cmp_lg_u32 s3, 0")
    a(f"s_cbranch_scc1 L_{name}_s1done")
    a("v_mov_b32 v38, s48")
    a("v_mov_b32 v40, s48")
    a.label(f"L_{name}_s1poll")
    a("buffer_load_dwordx4 v[34:37], v42, s[28:31], s36 offen sc1")
    a("s_mov_b64 exec, 0x3fff")
    a("buffer_load_dwordx4 v[38:41], v43, s[28:31], s37 offen sc1")
    a("s_mov_b64 exec, -1")
    a("s_sub_u32 s38, s38, 1")
    a(f"s_cbranch_scc1 L_{name}_s1out")
    a("s_waitcnt vmcnt(0)")
    a("v_xor_b32 v32, s48, v34")
    a("v_xor_b32 v33, s48, v36")
    a("v_xor_b32 v44, s48, v38")
    a("v_xor_b32 v45, s48, v40")
    a("v_or3_b32 v32, v32, v33, v44")
    a("v_or_b32 v32, v32, v45")
    a("v_cmp_ne_u32 vcc, 0, v32")
    a(f"s_cbranch_vccz L_{name}_s1out")
    a(f"s_sleep {SLEEP}")
    a(f"s_branch L_{name}_s1poll")
    a.label(f"L_{name}_s1out")
    a("v_max_f32 v35, v35, v37")
    a("ds_write_b32 v46, v35")
    a("s_waitcnt lgkmcnt(0)")
    a.label(f"L_{name}_s1done")
    a("s_barrier")
    a.stamp(7)
    a.vm = []


FBR = 112


def fb_load(a, track):
    a(f"s_mov_b32 s34, {FL2_OFF}")
    for i in range(4):
        if i == 3:
            a("s_mov_b32 exec_hi, 0")
        t = f"buffer_load_dwordx4 {vr(FBR+4*i,4)}, v{VL16}, s[28:31], s34 offen offset:{1024*i} sc1"
        a.vmem(t, "fb") if track else a(t)
    a("s_mov_b32 exec_hi, -1")


def fb_store(a, name, lab):
    a("s_cmp_lt_u32 s3, 4")
    a(f"s_cbranch_scc1 L_{name}_nofb{lab}")
    a("s_lshl_b32 s34, s2, 2")
    a("s_add_u32 s34, s34, s3")
    a("s_lshl_b32 s34, s34, 2")
    a(f"s_add_u32 s34, s34, {FL2_OFF - 16}")
    a("v_mov_b32 v2, 0")
    a("s_mov_b64 exec, 1")
    a(f"buffer_store_dword v{FBR+12}, v2, s[28:31], s34 offen sc1")
    a("s_mov_b64 exec, -1")
    a.label(f"L_{name}_nofb{lab}")


def fb_test(a):
    for i in range(0, 16, 2):
        a(f"v_xor_b32 v{FBR+i}, s48, v{FBR+i}")
        a(f"v_xor_b32 v{FBR+i+1}, s48, v{FBR+i+1}")
        if i:
            a(f"v_or3_b32 v{FBR}, v{FBR}, v{FBR+i}, v{FBR+i+1}")
        else:
            a(f"v_or_b32 v{FBR}, v{FBR}, v{FBR+1}")
    a(f"v_cmp_ne_u32 vcc, 0, v{FBR}")


def fb_spin(a, name, lab):
    a(f"s_mov_b32 s38, {SPIN}")
    a.label(f"L_{name}_{lab}")
    for r in range(12, 16):
        a(f"v_mov_b32 v{FBR+r}, s48")
    fb_load(a, False)
    a("s_waitcnt vmcnt(0)")
    fb_test(a)
    a("s_sub_u32 s38, s38, 1")
    a(f"s_cbranch_scc1 L_{name}_{lab}x")
    a(f"s_cbranch_vccnz L_{name}_{lab}")
    a.label(f"L_{name}_{lab}x")


def b1_stage(a, track):
    a("s_lshl_b32 s34, s45, 7")
    a(f"s_add_u32 s34, s34, {B1F_OFF}")
    a("s_lshl_b32 s35, s3, 7")
    a(f"s_add_u32 m0, s35, {B1_L}")
    a("s_mov_b32 exec_hi, 0")
    t = "buffer_load_dword v3, s[52:55], s34 offen sc1 lds"
    a.vmem(t, "b1") if track else a(t)
    a("s_mov_b32 exec_hi, -1")


def attention(a, name):
    def dma(c):
        a(f"s_add_u32 m0, s41, {(c % 4) * 32768}")
        src = "s40" if c < 8 else "s22"
        a("s_nop 0")
        for f in range(4):
            a.vmem(f"buffer_load_dwordx4 v{VL16}, s[28:31], {src} offen offset:{1024*f} sc1 lds", f"kv{c}")
        a(f"s_add_u32 {src}, {src}, {16384 if c < 8 else 4096}")

    def wload(f):
        if f % 4 == 0 and f > 0:
            a("s_add_u32 s42, s42, 4096")
        a.vmem(f"buffer_load_dwordx4 {vr(wreg(f),4)}, v{VL16}, s[28:31], s42 offen offset:{1024*(f%4)} sc1", f"w{f}")

    a("s_mul_i32 s35, s43, 7168")
    for i in range(4):
        a.vmem(f"buffer_load_dwordx2 {vr(Q+2*i,2)}, v3, s[28:31], s35 offen offset:{128*i} sc1", "q")
    a(f"ds_read_b32 v{T0}, v46")
    dma(0)
    dma(1)
    dma(2)
    a.vmem(f"buffer_load_dwordx4 {vr(XR,4)}, v0, s[16:19], s44 offen", "x")
    a("s_waitcnt lgkmcnt(0)")
    wave_allreduce(a, "v_max_f32", T0, T0 + 1)
    a(f"v_sqrt_f32 v{T0}, v{T0}")
    a("s_mul_i32 s45, s33, 7")
    a("s_add_u32 s45, s45, s3")
    a(f"v_mul_f32 v{T0}, {f32hex(-1.02)}, v{T0}")
    a("v_lshlrev_b32 v3, 2, v1")
    a("s_mul_i32 s23, s43, 57344")
    a("s_mul_i32 s34, s3, 896")
    a("s_add_u32 s23, s23, s34")
    a(f"s_add_u32 s23, s23, {PART_OFF}")
    a("s_mov_b32 s51, s23")
    for r in range(12, 16):
        a(f"v_mov_b32 v{FBR+r}, s48")
    a(f"v_mov_b32 v{T0+2}, {f32hex(-M_LIMIT)}")
    a("v_cmp_lt_u32 vcc, 31, v1")
    a.wait(vm="q")
    a(f"v_cndmask_b32 v{Q+6}, v{Q+6}, 0, vcc")
    a(f"v_cndmask_b32 v{Q+7}, v{Q+7}, 0, vcc")
    for i in range(8):
        a(f"v_dot2_f32_bf16 v{SB+i%2}, v{Q+i}, v{Q+i}, {'0' if i < 2 else f'v{SB+i%2}'}")
    a("s_nop 2")
    a(f"v_add_f32 v{T0+1}, v{SB}, v{SB+1}")
    a(f"v_mov_b32 v{SB}, v{T0+1}")
    a("s_nop 1")
    a(f"v_permlane32_swap_b32 v{T0+1}, v{SB}")
    a("s_nop 1")
    a(f"v_add_f32 v{T0+1}, v{T0+1}, v{SB}")
    a(f"v_sqrt_f32 v{T0+1}, v{T0+1}")
    a("s_nop 0")
    a(f"v_mul_f32 v{T0}, v{T0}, v{T0+1}")
    a(f"v_cmp_nge_f32 s[46:47], v{T0}, v{T0+2}")
    a(f"v_lshrrev_b32 v{T0}, 16, v{T0}")
    a("s_nop 2")
    a("s_cmp_lg_u32 s47, 0")
    a(f"s_cbranch_scc1 L_{name}_slow")
    a(f"v_cndmask_b32 v{Q+6}, v{Q+6}, v{T0}, vcc")
    for r in range(4):
        a(f"v_mov_b32 v{T0+r}, -1")

    def kvaddr(i, frag):
        c, t = divmod(i, 4)
        slot = c % 4
        base = VKV0 if slot < 2 else VKV1
        return f"v{base} offset:{(slot % 2) * 32768 + t * 4096 + frag * 1024}"

    def readK(i):
        b = KF + 8 * (i % 2)
        a.lds(f"ds_read_b128 {vr(b,4)}, {kvaddr(i,0)}", f"k{i}")
        a.lds(f"ds_read_b128 {vr(b+4,4)}, {kvaddr(i,1)}", f"k{i}")

    def readV(i):
        b = VF + 8 * (i % 2)
        a.lds(f"ds_read_b128 {vr(b,4)}, {kvaddr(i,2)}", f"v{i}")
        a.lds(f"ds_read_b128 {vr(b+4,4)}, {kvaddr(i,3)}", f"v{i}")

    def qk(i, m):
        s = SB + 16 * (i % 2)
        k = KF + 8 * (i % 2) + 4 * m
        c = "0" if m == 0 else vr(s, 16)
        a(f"v_mfma_f32_32x32x16_bf16 {vr(s,16)}, {vr(k,4)}, {vr(Q+4*m,4)}, {c}")

    def pv(i, m):
        v = VF + 8 * (i % 2) + 4 * m
        a(f"v_mfma_f32_32x32x16_bf16 {vr(O,16)}, {vr(v,4)}, {vr(P+4*m,4)}, {vr(O,16)}")

    def ex(i, r):
        s = SB + 16 * (i % 2) + r
        a(f"v_exp_f32 v{s}, v{s}")

    def cv(i, u):
        s = SB + 16 * (i % 2) + 2 * u
        a(f"v_cvt_pk_bf16_f32 v{P+u}, v{s}, v{s+1}")

    a.wait(vm="kv0")
    fb_store(a, name, "f")
    a("s_barrier")
    a.stamp(8)
    readK(0)
    readK(1)
    readV(0)
    a.wait(lg="k0")
    qk(0, 0)
    qk(0, 1)
    a("s_nop 7")
    a("s_nop 3")
    wq = list(range(NPRE))
    NT = 32
    FBI = 5
    for i in range(NT):
        c = i // 4
        if i % 4 == 2 and c + 1 <= 7:
            a.wait(vm=f"kv{c+1}")
            a("s_barrier")
            dma(c + 3)
        a(f"s_setprio {3 - (i + 2) % 4}")
        if i + 1 < NT:
            a.wait(lg=f"k{i+1}")
            qk(i + 1, 0)
        ex(i, 0)
        if i + 2 < NT:
            readK(i + 2)
        for r in range(1, 5):
            ex(i, r)
        if i > 0:
            pv(i - 1, 1)
        ex(i, 5)
        if i + 1 < NT:
            readV(i + 1)
        ex(i, 6)
        ex(i, 7)
        for u in range(4):
            cv(i, u)
        if i + 1 < NT:
            qk(i + 1, 1)
        ex(i, 8)
        if i == FBI:
            fb_load(a, True)
        if i == FBI + 2:
            a.wait(vm="fb")
            fb_test(a)
            a(f"s_cbranch_vccnz L_{name}_fbwait")
            a.label(f"L_{name}_fbok")
            b1_stage(a, True)
        if i >= FBI + 3 and wq:
            wload(wq.pop(0))
            if i % 2 == 0 and wq:
                wload(wq.pop(0))
        nclr = 0
        if "clr2" in OPT:
            nclr = 2 if i % 4 == 3 and i < 16 else 0
        elif "clrlate" in OPT:
            nclr = 1 if i >= 24 else 0
        elif "clrl2" in OPT:
            nclr = 1 if i >= 16 and i % 2 == 1 else 0
        elif "noclr" not in OPT:
            nclr = 1 if i % 4 == 3 else 0
        if nclr:
            a("s_mov_b32 exec_hi, 0xffffff")
            for _ in range(nclr):
                a.vmem(f"buffer_store_dwordx4 {vr(T0,4)}, v{VL16}, s[28:31], s51 offen sc1", "clr")
                a("s_add_u32 s51, s51, 7168")
            a("s_mov_b32 exec_hi, -1")
        for r in range(9, 13):
            ex(i, r)
        a.wait(lg=f"v{i}")
        pv(i, 0)
        for r in range(13, 16):
            ex(i, r)
        for u in range(4, 8):
            cv(i, u)
    assert not wq
    a("s_setprio 0")
    a("s_nop 0")
    pv(NT - 1, 1)
    a.label(f"L_{name}_join")
    a.stamp(9)
    a("s_add_u32 s42, s42, 8192")
    for f in range(NPRE + NSTG, 49):
        wload(f)
    return wload


def slow_path(a, name):
    a.label(f"L_{name}_fbwait")
    fb_spin(a, name, "fbs")
    a(f"s_branch L_{name}_fbok")
    a.label(f"L_{name}_slow")
    fb_store(a, name, "s")
    fb_spin(a, name, "fbt")
    b1_stage(a, False)
    a(f"v_mov_b32 v{MRUN}, {f32hex(-3.0e38)}")
    a("s_mov_b32 s37, 0")
    a("s_movk_i32 s39, 0x4000")
    a.label(f"L_{name}_sloop")
    a("s_waitcnt vmcnt(0)")
    a("s_barrier")
    a("s_cmp_eq_u32 s37, 0")
    a(f"s_cbranch_scc1 L_{name}_snodma")
    a("s_cmp_eq_u32 s37, 6")
    a("s_cselect_b32 s40, s22, s40")
    a("s_cselect_b32 s39, 0x1000, s39")
    a("s_add_u32 s34, s37, 2")
    a("s_and_b32 s34, s34, 3")
    a("s_lshl_b32 s34, s34, 15")
    a("s_add_u32 m0, s41, s34")
    a("s_nop 0")
    for f in range(4):
        a(f"buffer_load_dwordx4 v{VL16}, s[28:31], s40 offen offset:{1024*f} sc1 lds")
    a("s_add_u32 s40, s40, s39")
    a.label(f"L_{name}_snodma")
    a("s_and_b32 s34, s37, 3")
    a("s_lshl_b32 s34, s34, 15")
    a(f"v_add_u32 v2, s34, v{VKV0}")
    a("s_mov_b32 s46, 0")
    a.label(f"L_{name}_stile")
    a(f"ds_read_b128 {vr(KF,4)}, v2")
    a(f"ds_read_b128 {vr(KF+4,4)}, v2 offset:1024")
    a(f"ds_read_b128 {vr(VF,4)}, v2 offset:2048")
    a(f"ds_read_b128 {vr(VF+4,4)}, v2 offset:3072")
    a("v_add_u32 v2, 4096, v2")
    a("s_waitcnt lgkmcnt(0)")
    a(f"v_mfma_f32_32x32x16_bf16 {vr(SB,16)}, {vr(KF,4)}, {vr(Q,4)}, 0")
    a(f"v_mfma_f32_32x32x16_bf16 {vr(SB,16)}, {vr(KF+4,4)}, {vr(Q+4,4)}, {vr(SB,16)}")
    a("s_nop 15")
    a(f"v_max3_f32 v{T0}, v{SB}, v{SB+1}, v{MRUN}")
    for r in range(2, 16, 2):
        a(f"v_max3_f32 v{T0}, v{SB+r}, v{SB+r+1}, v{T0}")
    a(f"v_mov_b32 v{T0+1}, v{T0}")
    a("s_nop 1")
    a(f"v_permlane32_swap_b32 v{T0}, v{T0+1}")
    a("s_nop 1")
    a(f"v_max_f32 v{T0}, v{T0}, v{T0+1}")
    a(f"v_sub_f32 v{T0+2}, v{MRUN}, v{T0}")
    a(f"v_exp_f32 v{T0+2}, v{T0+2}")
    a(f"v_mov_b32 v{MRUN}, v{T0}")
    for r in range(16):
        a(f"v_sub_f32 v{SB+r}, v{SB+r}, v{T0}")
        a(f"v_mul_f32 v{O+r}, v{O+r}, v{T0+2}")
    for r in range(16):
        a(f"v_exp_f32 v{SB+r}, v{SB+r}")
    a("s_nop 0")
    for u in range(8):
        a(f"v_cvt_pk_bf16_f32 v{P+u}, v{SB+2*u}, v{SB+2*u+1}")
    a("s_nop 1")
    a(f"v_mfma_f32_32x32x16_bf16 {vr(O,16)}, {vr(VF,4)}, {vr(P,4)}, {vr(O,16)}")
    a(f"v_mfma_f32_32x32x16_bf16 {vr(O,16)}, {vr(VF+4,4)}, {vr(P+4,4)}, {vr(O,16)}")
    a("s_nop 15")
    a("s_add_u32 s46, s46, 1")
    a("s_cmp_lt_u32 s46, 4")
    a(f"s_cbranch_scc1 L_{name}_stile")
    a("s_add_u32 s37, s37, 1")
    a("s_cmp_lt_u32 s37, 8")
    a(f"s_cbranch_scc1 L_{name}_sloop")
    for f in range(NPRE):
        if f % 4 == 0 and f > 0:
            a("s_add_u32 s42, s42, 4096")
        a(f"buffer_load_dwordx4 {vr(wreg(f),4)}, v{VL16}, s[28:31], s42 offen offset:{1024*(f%4)} sc1")
    for r in range(4):
        a(f"v_mov_b32 v{T0+r}, -1")
    a("s_mov_b32 exec_hi, 0xffffff")
    for _ in range(8):
        a(f"buffer_store_dwordx4 {vr(T0,4)}, v{VL16}, s[28:31], s51 offen sc1")
        a("s_add_u32 s51, s51, 7168")
    a("s_mov_b32 exec_hi, -1")
    a("s_waitcnt vmcnt(0)")
    a(f"s_branch L_{name}_join")


HX = 8
W1R = WPRE
A0, A1, BR, MU, PK = 16, 32, 48, 64, 80
NW2E = 12


def w2reg(q):
    if q < 4:
        return 88 + 4 * q
    if q < NW2E:
        return 224 + 4 * (q - 4)
    return W1R + 4 * (q - NW2E)


def el(e):
    return HX + 2 * (e % 4) + e // 4


def w1load(a, ks):
    if ks % 4 == 0 and ks > 0:
        a("s_add_u32 s45, s45, 4096")
    a.vmem(f"buffer_load_dwordx4 {vr(W1R+4*ks,4)}, v{VL16}, s[52:55], s45 offen offset:{1024*(ks%4)} sc1", f"a{ks}")


def epilogue(a, name):
    a("s_mul_i32 s47, s45, 28672")
    a(f"s_add_u32 s45, s47, {W1F_OFF}")
    a(f"s_add_u32 s47, s47, {W2F_OFF}")
    a("v_and_b32 v2, 31, v1")
    a("s_lshl_b32 s34, s3, 8")
    a(f"s_add_u32 s34, s34, {LX_L}")
    a("v_lshl_add_u32 v3, v2, 3, s34")
    a(f"v_add_u32 v{VKV1}, s41, v{VL16}")
    a(f"v_mov_b32 v{T0}, v{O+12}")
    a(f"v_mov_b32 v{T0+1}, v{O+12}")
    a("s_nop 1")
    a(f"v_permlane32_swap_b32 v{T0}, v{T0+1}")
    a("s_nop 0")
    a(f"v_mov_b32 v{T0}, v{MRUN}")
    a(f"ds_write_b64 v3, {vr(T0,2)}")
    a("v_xor_b32 v3, 1024, v3")
    a.wait(vm="kv9")
    for f in range(NSTG):
        a(f"ds_read_b128 {vr(WSTG+4*f,4)}, v{VKV1} offset:{(f//4)*32768 + (f%4)*1024}")
    a("s_waitcnt lgkmcnt(8)")
    a("s_barrier")
    a(f"ds_read_b64 {vr(T0+2,2)}, v3")
    a("v_lshrrev_b32 v3, 3, v2")
    a("s_lshl_b32 s34, s20, 1")
    a(f"v_lshrrev_b32 v{VKV0}, 1, v3")
    a(f"v_add_u32 v{VKV0}, s34, v{VKV0}")
    a(f"v_mul_u32_u24 v{VKV0}, 7, v{VKV0}")
    a("v_and_b32 v3, 1, v3")
    a("v_and_b32 v2, 7, v2")
    a("s_lshl_b32 s34, s21, 7")
    a(f"s_add_u32 s34, s34, {OB_L}")
    a("v_lshl_add_u32 v2, v2, 4, s34")
    a(f"v_lshl_add_u32 v2, v{VKV0}, 8, v2")
    a(f"v_mul_u32_u24 v{VKV0}, 768, v3")
    a(f"v_add_u32 v{VKV0}, v{VKV0}, v2")
    a(f"v_lshl_add_u32 v2, v3, 3, v2")
    a(f"v_add_u32 v2, {6*256}, v2")
    a("v_cmp_lt_u32 vcc, 31, v1")
    a(f"v_add_u32 v3, 256, v{VKV0}")
    a(f"v_add_u32 v{VKV1}, 512, v{VKV0}")
    a(f"v_cndmask_b32 v{VKV0}, v{VKV0}, v{VKV1}, vcc")
    a("v_cndmask_b32 v2, v3, v2, vcc")
    a("v_add_u32 v3, 8, v3")
    a(f"v_add_u32 v{VKV1}, {TRASH_L}, v{VL16}")
    a(f"v_cndmask_b32 v3, v3, v{VKV1}, vcc")
    a("s_waitcnt lgkmcnt(0)")
    a(f"v_max_f32 v{MRUN}, v{T0}, v{T0+2}")
    a(f"v_sub_f32 v{T0}, v{T0}, v{MRUN}")
    a(f"v_sub_f32 v{T0+2}, v{T0+2}, v{MRUN}")
    a(f"v_exp_f32 v{T0}, v{T0}")
    a(f"v_exp_f32 v{T0+2}, v{T0+2}")
    a(f"v_mul_f32 v{T0+1}, v{T0+1}, v{T0}")
    a(f"v_fmac_f32 v{T0+1}, v{T0+3}, v{T0+2}")
    a(f"v_rcp_f32 v{T0+1}, v{T0+1}")
    a(f"v_mul_f32 v{T0}, {f32hex(1.0/XSCALE)}, v{T0}")
    a(f"v_mul_f32 v{T0}, v{T0}, v{T0+1}")
    for j in range(8):
        a(f"v_pk_mul_f32 {vr(O+2*j,2)}, {vr(O+2*j,2)}, {vr(T0,2)} op_sel_hi:[1,0]")
    for u in range(8):
        a(f"v_cvt_pk_bf16_f32 v{Q+u}, v{O+2*u}, v{O+2*u+1}")
    a(f"ds_write_b128 v{VKV0}, {vr(Q,4)}")
    a(f"ds_write_b64 v2, {vr(Q+4,2)}")
    a(f"ds_write_b64 v3, {vr(Q+6,2)}")
    a("s_and_b32 s34, s3, 1")
    a("s_mul_i32 s35, s34, 7168")
    a(f"s_add_u32 s35, s35, {OB_L}")
    a(f"v_add_u32 v2, s35, v{VL16}")
    a("s_waitcnt lgkmcnt(0)")
    a("s_barrier")
    a.stamp(10)
    a.lg = []

    def readB(ks):
        a.lds(f"ds_read_b128 {vr(BF+4*(ks%4),4)}, v2 offset:{1024*ks}", f"b{ks}")
    for ks in range(4):
        readB(ks)
    nw1 = 0
    for ks in range(7):
        a.wait(lg=f"b{ks}")
        for nt in range(7):
            f = ks * 7 + nt
            a.wait(vm=f"w{f}")
            c = "0" if ks == 0 else vr(ACC2 + 4 * nt, 4)
            a(f"v_mfma_f32_16x16x32_bf16 {vr(ACC2+4*nt,4)}, {vr(wreg(f),4)}, {vr(BF+4*(ks%4),4)}, {c}")
            if ks >= 1 and nt in (1, 4) or ks >= 5 and nt == 6:
                w1load(a, nw1)
                nw1 += 1
        if ks + 4 < 7:
            readB(ks + 4)
    a("v_and_b32 v2, 15, v1")
    a(f"v_mul_u32_u24 v2, {RED_ROW}, v2")
    a("v_lshrrev_b32 v3, 4, v1")
    a("v_lshl_add_u32 v2, v3, 4, v2")
    a(f"s_mul_i32 s35, s34, {2*RED_PART}")
    a("s_lshr_b32 s36, s3, 1")
    a("s_mul_i32 s36, s36, 448")
    a("s_add_u32 s35, s35, s36")
    a("v_add_u32 v2, s35, v2")
    a("s_nop 4")
    for nt in range(7):
        a(f"ds_write_b128 v2, {vr(ACC2+4*nt,4)} offset:{64*nt}")
    a("s_mul_i32 s35, s3, 7")
    a("v_lshrrev_b32 v3, 3, v1")
    a("v_add_u32 v3, s35, v3")
    a("v_and_b32 v36, 7, v1")
    a(f"v_mul_u32_u24 v2, {RED_ROW}, v36")
    a("v_lshrrev_b32 v37, 3, v3")
    a("v_lshl_add_u32 v2, v37, 8, v2")
    a("v_and_b32 v37, 7, v3")
    a("v_lshl_add_u32 v2, v37, 3, v2")
    xn2_address(a, VKV0, 3, 36)
    a(f"v_lshlrev_b32 v{VKV1}, 6, v36")
    a(f"v_add_u32 v{VKV1}, {ST_L}, v{VKV1}")
    a("v_cmp_gt_u32 vcc, 56, v1")
    a("s_waitcnt lgkmcnt(0)")
    a.stamp(11)
    a("s_barrier")
    R = 40
    for part in range(4):
        for c in range(4):
            a(f"ds_read_b64 {vr(R+8*part+2*c,2)}, v2 offset:{part*RED_PART + 64*c}")
    for c in range(4):
        src0, src1 = XR + c // 2, XR + 2 + c // 2
        if c % 2 == 0:
            a(f"v_lshlrev_b32 v{HX+2*c}, 16, v{src0}")
            a(f"v_lshlrev_b32 v{HX+2*c+1}, 16, v{src1}")
        else:
            a(f"v_and_b32 v{HX+2*c}, 0xffff0000, v{src0}")
            a(f"v_and_b32 v{HX+2*c+1}, 0xffff0000, v{src1}")
    a("v_lshrrev_b32 v3, 5, v1")
    a(f"v_lshl_add_u32 v3, v3, 5, v{VKV1}")
    a("s_lshl_b32 s35, s3, 2")
    a("v_add_u32 v3, s35, v3")
    for part in range(4):
        a(f"s_waitcnt lgkmcnt({12-4*part})")
        for c in range(4):
            a(f"v_pk_add_f32 {vr(HX+2*c,2)}, {vr(HX+2*c,2)}, {vr(R+8*part+2*c,2)}")
    TT = 16
    a(f"v_pk_add_f32 {vr(TT,2)}, {vr(HX,2)}, {vr(HX+2,2)}")
    a(f"v_pk_mul_f32 {vr(TT+2,2)}, {vr(HX,2)}, {vr(HX,2)}")
    a(f"v_pk_add_f32 {vr(TT,2)}, {vr(TT,2)}, {vr(HX+4,2)}")
    a(f"v_pk_fma_f32 {vr(TT+2,2)}, {vr(HX+2,2)}, {vr(HX+2,2)}, {vr(TT+2,2)}")
    a(f"v_pk_add_f32 {vr(TT,2)}, {vr(TT,2)}, {vr(HX+6,2)}")
    a(f"v_pk_fma_f32 {vr(TT+2,2)}, {vr(HX+4,2)}, {vr(HX+4,2)}, {vr(TT+2,2)}")
    a(f"v_add_f32 v{TT}, v{TT}, v{TT+1}")
    a(f"v_pk_fma_f32 {vr(TT+2,2)}, {vr(HX+6,2)}, {vr(HX+6,2)}, {vr(TT+2,2)}")
    a(f"v_cndmask_b32 v{TT}, 0, v{TT}, vcc")
    a(f"v_add_f32 v{TT+2}, v{TT+2}, v{TT+3}")
    a(f"v_cndmask_b32 v{TT+1}, 0, v{TT+2}, vcc")
    a("s_nop 1")
    a(f"v_permlane32_swap_b32 v{TT}, v{TT+1}")
    a("s_nop 1")
    a(f"v_add_f32 v{TT}, v{TT}, v{TT+1}")
    a(f"v_mov_b32 v{TT+1}, v{TT}")
    a("s_nop 1")
    a(f"v_permlane16_swap_b32 v{TT}, v{TT+1}")
    a("s_nop 1")
    a(f"v_add_f32 v{TT}, v{TT}, v{TT+1}")
    a("s_nop 1")
    a(f"v_add_f32_dpp v{TT}, v{TT}, v{TT} row_ror:8 row_mask:0xf bank_mask:0xf")
    a(f"ds_write_b32 v3, v{TT}")
    a("s_mul_i32 s35, s32, 57344")
    a("s_mul_i32 s37, s3, 7168")
    a("s_add_u32 s40, s35, s37")
    a(f"s_add_u32 s40, s40, {XN2F_OFF}")
    a("s_waitcnt lgkmcnt(0)")
    a("s_barrier")
    for i in range(4):
        a(f"ds_read_b128 {vr(R+4*i,4)}, v{VKV1} offset:{16*i}")
    a(f"v_mov_b32 v{TT+3}, {f32hex(EPS)}")
    a("s_waitcnt lgkmcnt(0)")
    a(f"v_pk_add_f32 {vr(R,2)}, {vr(R,2)}, {vr(R+2,2)}")
    a(f"v_pk_add_f32 {vr(R+8,2)}, {vr(R+8,2)}, {vr(R+10,2)}")
    a(f"v_pk_add_f32 {vr(R+4,2)}, {vr(R+4,2)}, {vr(R+6,2)}")
    a(f"v_pk_add_f32 {vr(R+12,2)}, {vr(R+12,2)}, {vr(R+14,2)}")
    a(f"v_pk_add_f32 {vr(R,2)}, {vr(R,2)}, {vr(R+4,2)}")
    a(f"v_pk_add_f32 {vr(R+8,2)}, {vr(R+8,2)}, {vr(R+12,2)}")
    a(f"v_add_f32 v{R}, v{R}, v{R+1}")
    a(f"v_add_f32 v{R+8}, v{R+8}, v{R+9}")
    a(f"v_mul_f32 v{TT}, {f32hex(-1.0/448)}, v{R}")
    a(f"v_mul_f32 v{TT+1}, {f32hex(1.0/448)}, v{R+8}")
    a(f"v_fma_f32 v{TT+1}, -v{TT}, v{TT}, v{TT+1}")
    a(f"v_max_f32 v{TT+1}, 0, v{TT+1}")
    a(f"v_add_f32 v{TT+1}, v{TT+1}, v{TT+3}")
    a(f"v_rsq_f32 v{TT+2}, v{TT+1}")
    a("s_nop 0")
    a(f"v_mul_f32 v{TT+2}, {f32hex(LOG2E)}, v{TT+2}")
    for c in range(4):
        a(f"v_pk_add_f32 {vr(R+2*c,2)}, {vr(HX+2*c,2)}, {vr(TT,2)} op_sel_hi:[1,0]")
    for c in range(4):
        a(f"v_pk_mul_f32 {vr(R+2*c,2)}, {vr(R+2*c,2)}, {vr(TT+2,2)} op_sel_hi:[1,0]")
    for u in range(4):
        a(f"v_cvt_pk_bf16_f32 v{R+8+u}, v{el(2*u)-HX+R}, v{el(2*u+1)-HX+R}")
    a("s_mov_b64 exec, vcc")
    a.vmem(f"buffer_store_dwordx4 {vr(R+8,4)}, v{VKV0}, s[28:31], s36 offen sc1", "xs")
    a("s_mov_b64 exec, -1")
    a.stamp(12)
    a("s_barrier")
    while nw1 < 28:
        w1load(a, nw1)
        nw1 += 1


def mish_ops(acc, half, u, pk):
    e, w = acc + 8 * half, u + 8
    ops = []
    ops += [f"v_exp_f32 v{u+r}, v{e+r}" for r in range(8)]
    ops += [f"v_fma_f32 v{w+r}, v{u+r}, 0.5, 1.0" for r in range(8)]
    ops += [f"v_fma_f32 v{w+r}, v{u+r}, v{w+r}, 1.0" for r in range(8)]
    ops += [f"v_rcp_f32 v{w+r}, v{w+r}" for r in range(8)]
    ops += [f"v_fma_f32 v{u+r}, -v{e+r}, v{w+r}, v{e+r}" for r in range(8)]
    ops += [f"v_cvt_pk_bf16_f32 v{pk+r}, v{u+2*r}, v{u+2*r+1}" for r in range(4)]
    return ops


def ffn(a, name):
    VA, VP = VKV0, VKV1
    a("s_mul_i32 s35, s3, 7168")
    a("s_add_u32 s41, s40, 4096")
    a(f"v_add_u32 v{VA}, s35, v{VL16}")
    a("v_lshrrev_b32 v3, 5, v1")
    a("v_lshlrev_b32 v3, 6, v3")
    a("s_lshl_b32 s34, s3, 7")
    a(f"s_add_u32 s34, s34, {B1_L}")
    a("v_add_u32 v3, s34, v3")
    for i in range(4):
        a(f"ds_read_b128 {vr(A1+4*i,4)}, v3 offset:{16*i}")
    a(f"s_mov_b32 s36, {SPIN2}")
    a.wait(vm="xs")
    a.stamp(13)

    def xdma(track):
        a("s_mov_b32 m0, s35")
        a("s_nop 0")
        for f in range(7):
            if f == 4:
                a("s_add_u32 m0, s35, 4096")
                a("s_nop 0")
            t = f"buffer_load_dwordx4 v{VL16}, s[28:31], s{40 + f//4} offen offset:{1024*(f%4)} sc1 lds"
            a.vmem(t, "xn") if track else a(t)
    xdma(True)

    def w2load(q):
        if q % 4 == 0 and q > 0:
            a("s_add_u32 s47, s47, 4096")
        a.vmem(f"buffer_load_dwordx4 {vr(w2reg(q),4)}, v{VL16}, s[52:55], s47 offen offset:{1024*(q%4)} sc1", f"c{q}")
    for q in range(NW2E):
        w2load(q)
    a("v_bfe_u32 v3, v1, 3, 2")
    a(f"v_mul_u32_u24 v{VP}, 57344, v3")
    a("v_lshrrev_b32 v3, 5, v1")
    a(f"v_lshl_add_u32 v{VP}, v3, 7, v{VP}")
    a("v_and_b32 v3, 7, v1")
    a(f"v_lshl_add_u32 v{VP}, v3, 4, v{VP}")
    a("s_lshl_b32 s38, s32, 6")
    a("s_add_u32 s38, s38, s33")
    a("s_mul_i32 s38, s38, 7168")
    a("s_lshl_b32 s39, s3, 10")
    a("s_add_u32 s38, s38, s39")
    a(f"s_add_u32 s38, s38, {PART_OFF}")
    a(f"s_add_u32 s39, s38, {4*57344}")
    a.wait(vm="xn")
    a.label(f"L_{name}_xchk")
    CK = 48
    for f in range(7):
        a(f"ds_read_b128 {vr(CK+4*f,4)}, v{VA} offset:{1024*f}")
    for f in range(7):
        a(f"s_waitcnt lgkmcnt({6-f})")
        a(f"v_max3_u32 v2, v{CK+4*f}, v{CK+4*f+1}, {'0' if f == 0 else 'v2'}")
        a(f"v_max3_u32 v2, v{CK+4*f+2}, v{CK+4*f+3}, v2")
    a("v_cmp_eq_u32 vcc, -1, v2")
    a(f"s_cbranch_vccz L_{name}_xok")
    a("s_cmp_eq_u32 s36, 0")
    a(f"s_cbranch_scc1 L_{name}_xok")
    a("s_sub_u32 s36, s36, 1")
    xdma(False)
    a("s_waitcnt vmcnt(0)")
    a(f"s_branch L_{name}_xchk")
    a.label(f"L_{name}_xok")
    a(f"v_add_u32 v{VA}, {ACT_L}, v{VL16}")
    a("s_lshl_b32 s34, s3, 11")
    a(f"v_add_u32 v2, s34, v{VA}")
    a("s_barrier")
    a.stamp(14)
    a("s_cmp_eq_u32 s3, 7")
    a(f"s_cbranch_scc1 L_{name}_idle7")
    vm_save = list(a.vm)
    a.lg = []

    def readX(n):
        a.lds(f"ds_read_b128 {vr(BR+4*(n%4),4)}, v{VL16} offset:{XN2_L + 1024*n}", f"x{n}")
    for n in range(4):
        readX(n)
    fill = []
    for h in range(2):
        fill += mish_ops(A0, h, MU, PK + 4 * h) + [("w", h)]
    for n in range(56):
        mt, ks = divmod(n, 28)
        acc = vr(A0 if mt == 0 else A1, 16)
        a.wait(lg=f"x{n}")
        a(f"v_mfma_f32_32x32x16_bf16 {acc}, {vr(W1R+4*ks,4)}, {vr(BR+4*(n%4),4)}, {vr(A1,16) if n == 0 else acc}")
        if n + 4 < 56:
            readX(n + 4)
        if mt == 1 and NW2E + ks < 28:
            w2load(NW2E + ks)
        if mt == 1 and ks >= 2:
            budget = 22
            while fill and budget > 0:
                op = fill.pop(0)
                if isinstance(op, tuple):
                    a("s_nop 0")
                    a.lds(f"ds_write_b128 v2, {vr(PK+4*op[1],4)} offset:{1024*op[1]}", "aw")
                else:
                    a(op)
                    budget -= 8 if op.startswith(("v_exp", "v_rcp")) else 4
    while fill:
        op = fill.pop(0)
        if isinstance(op, tuple):
            a("s_nop 0")
            a.lds(f"ds_write_b128 v2, {vr(PK+4*op[1],4)} offset:{1024*op[1]}", "aw")
        else:
            a(op)
    a("s_nop 7")
    a("s_nop 3")
    for h in range(2):
        for op in mish_ops(A1, h, MU, PK + 4 * h):
            a(op)
        a("s_nop 0")
        a(f"ds_write_b128 v2, {vr(PK+4*h,4)} offset:{14336+1024*h}")
    a("s_waitcnt lgkmcnt(0)")
    a.stamp(15)
    a("s_barrier")
    a.lg = []

    def readA(n):
        a.lds(f"ds_read_b128 {vr(BR+4*(n%4),4)}, v{VA} offset:{1024*n}", f"y{n}")
    for n in range(4):
        readA(n)
    C = [(A0, A1), (W1R + 64, W1R + 80)]

    def pack_ops(mt):
        ops = []
        for j in range(4):
            ops += [f"v_cvt_pk_bf16_f32 v{MU+4*j+t}, v{C[mt][0]+4*j+t}, v{C[mt][1]+4*j+t}" for t in range(4)]
            ops.append(f"buffer_store_dwordx4 {vr(MU+4*j,4)}, v{VP}, s[28:31], s{38+mt} offen offset:{256*j} sc1")
        return ops
    fill = pack_ops(0)
    for n in range(28):
        mt, ks = divmod(n, 14)
        a.wait(lg=f"y{n}")
        for c in range(2):
            a.wait(vm=f"c{2*ks+c}")
            acc = vr(C[mt][c], 16)
            a(f"v_mfma_f32_32x32x16_bf16 {acc}, {vr(w2reg(2*ks+c),4)}, {vr(BR+4*(n%4),4)}, {'0' if ks == 0 else acc}")
            if mt == 1 and ks >= 1 and fill:
                for _ in range(3):
                    if fill:
                        a(fill.pop(0))
        if n + 4 < 28:
            readA(n + 4)
    assert not fill
    a("s_nop 7")
    a("s_nop 3")
    for op in pack_ops(1):
        a(op)
    a.stamp(16)
    a(f"s_branch L_{name}_pub3")
    a.label(f"L_{name}_idle7")
    a("s_cmp_lg_u32 s2, 0")
    a(f"s_cbranch_scc1 L_{name}_noep")
    a("v_mov_b32 v2, s48")
    a("v_mov_b32 v3, 0")
    a(f"s_mov_b32 s34, {EP_OFF}")
    a("s_mov_b64 exec, 1")
    a("buffer_store_dword v2, v3, s[28:31], s34 offen sc1")
    a("s_mov_b64 exec, -1")
    a.label(f"L_{name}_noep")
    a("s_barrier")
    a.label(f"L_{name}_pub3")
    a(f"s_mov_b32 s36, {SPIN2}")
    a(f"s_mov_b32 s34, {f32hex(LN2)}")
    for p in range(8):
        a(f"s_add_u32 s{4+p}, s23, {7168*p}")
    a("s_waitcnt vmcnt(0)")
    a("s_barrier")
    a.stamp(17)
    a.vm = []
    R, SM = 32, 16
    a("s_mov_b32 exec_hi, 0xffffff")
    for p in range(8):
        a.vmem(f"buffer_load_dwordx4 {vr(R+4*p,4)}, v{VL16}, s[28:31], s{4+p} offen sc1", f"p{p}")
    for p in range(8):
        a.wait(vm=f"p{p}")
        a.label(f"L_{name}_pc{p}")
        a(f"v_max3_u32 v2, v{R+4*p}, v{R+4*p+1}, v{R+4*p+2}")
        a(f"v_max_u32 v2, v2, v{R+4*p+3}")
        a("v_cmp_eq_u32 vcc, -1, v2")
        a(f"s_cbranch_vccz L_{name}_pk{p}")
        a("s_cmp_eq_u32 s36, 0")
        a(f"s_cbranch_scc1 L_{name}_pk{p}")
        a("s_sub_u32 s36, s36, 1")
        a(f"buffer_load_dwordx4 {vr(R+4*p,4)}, v{VL16}, s[28:31], s{4+p} offen sc1")
        a("s_waitcnt vmcnt(0)")
        a(f"s_branch L_{name}_pc{p}")
        a.label(f"L_{name}_pk{p}")
        for t in range(4):
            if p == 0:
                a(f"v_lshlrev_b32 v{SM+2*t}, 16, v{R+t}")
                a(f"v_and_b32 v{SM+2*t+1}, 0xffff0000, v{R+t}")
            else:
                a(f"v_lshlrev_b32 v{SM+8+2*t}, 16, v{R+4*p+t}")
                a(f"v_and_b32 v{SM+8+2*t+1}, 0xffff0000, v{R+4*p+t}")
        if p > 0:
            for t in range(4):
                a(f"v_pk_add_f32 {vr(SM+2*t,2)}, {vr(SM+2*t,2)}, {vr(SM+8+2*t,2)}")
    for e in range(8):
        a(f"v_fmac_f32 v{el(e)}, s34, v{SM+e}")
    for u in range(4):
        a(f"v_cvt_pk_bf16_f32 v{SM+u}, v{el(2*u)}, v{el(2*u+1)}")
    a(f"buffer_store_dwordx4 {vr(SM,4)}, v0, s[24:27], s44 offen")
    a.stamp(18)


def gen_pk(name):
    a = Asm()
    a("s_cmp_ge_u32 s2, 256")
    a(f"s_cbranch_scc1 L_{name}_end")
    a.stamp(0)
    a("s_load_dwordx4 s[4:7], s[0:1], 0")
    a("s_load_dwordx4 s[8:11], s[0:1], 16")
    a("s_load_dwordx2 s[12:13], s[0:1], 32")
    a("s_load_dwordx4 s[40:43], s[0:1], 48")
    a("s_load_dwordx4 s[44:47], s[0:1], 64")
    a("s_load_dwordx2 s[14:15], s[0:1], 88")
    a("v_lshrrev_b32 v2, 6, v0")
    a("v_and_b32 v1, 63, v0")
    a("v_readfirstlane_b32 s3, v2")
    phase_a(a, name)
    sync1(a, name)
    attention(a, name)
    epilogue(a, name)
    ffn(a, name)
    a.end()
    a.label(f"L_{name}_end")
    a("s_endpgm")
    slow_path(a, name)
    a.label(f"L_{name}_last")
    return a.text(), kernel_desc(name, 256, 64)
```

```python
import os
DBG = set(int(t) for t in os.environ.get("PKDBG", "").split(",") if t)
PROF = {"on": False, "kidx": 0, "off": 0x1060000, "n": 12, "base": 64}

class Asm:
    def dstamp(self, i):
        if i in DBG:
            self.stamp(i, True)

    def stamp(self, i, dbg=False):
        if i in DBG and not dbg:
            return
        if PROF["on"]:
            B = PROF["base"]
            self(f"{'s_memtime' if PROF.get('cyc') else 's_memrealtime'} s[{B+2*i}:{B+1+2*i}]")
            if i == 0:
                self("s_memtime s[96:97]")
                for j in range(1, PROF["n"]):
                    self(f"s_mov_b32 s{B+2*j}, 0")

    def cstamp(self, i):
        if PROF["on"]:
            B = PROF["base"]
            self(f"s_memtime s[{B+2*i}:{B+1+2*i}]")

    def end(self):
        if PROF["on"] == "dbg":
            B, N = PROF["base"], PROF["n"]
            sel = [int(t) for t in os.environ.get("PKSEL", "1,2,3,4,5,6,7,8,9,12,14,16,17,18,19").split(",")]
            self("s_waitcnt vmcnt(0)")
            self(f"s_memrealtime s[{B+2*(N-1)}:{B+1+2*(N-1)}]")
            self("s_load_dwordx2 s[96:97], s[0:1], 80")
            self("s_waitcnt lgkmcnt(0)")
            w = os.environ.get("PKWG")
            if w is not None:
                wg, wv = w.split(":")
                self(f"s_cmp_lg_u32 s2, {wg}")
                self("s_cbranch_scc1 L_dbg_end")
                self(f"s_cmp_lg_u32 s3, {wv}")
                self("s_cbranch_scc1 L_dbg_end")
            self(f"s_not_b32 s98, s{B}")
            self("v_mov_b32 v0, 0")
            self("v_writelane_b32 v0, s98, 0")
            for i, t in enumerate(sel):
                self(f"v_writelane_b32 v0, s{B+2*t}, {i+1}")
            self("v_lshlrev_b32 v1, 2, v1")
            self("s_mov_b32 s98, 256")
            self("s_mov_b32 s99, 0x20000")
            self("s_mov_b64 exec, 0xffff")
            self("buffer_atomic_umax v0, v1, s[96:99], 0 offen")
            self("s_waitcnt vmcnt(0)")
            self("L_dbg_end:")
        elif PROF["on"]:
            B, N = PROF["base"], PROF["n"]
            rec = 64 if N <= 14 else 128
            self("s_waitcnt vmcnt(0)")
            self(f"{'s_memtime' if PROF.get('cyc') else 's_memrealtime'} s[{B+2*(N-1)}:{B+1+2*(N-1)}]")
            self("s_memtime s[98:99]")
            self("s_mov_b64 exec, 1")
            self("s_lshl_b32 s100, s2, 3")
            self("s_add_u32 s100, s100, s3")
            self(f"s_mul_i32 s100, s100, {rec}")
            self(f"s_add_u32 s100, s100, {PROF['off'] + PROF['kidx'] * 512 * 8 * rec}")
            self("v_mov_b32 v1, 0")
            self("s_waitcnt lgkmcnt(0)")
            self("s_sub_u32 s98, s98, s96")
            for i in range(N):
                self(f"v_mov_b32 v0, s{B+2*i}")
                self(f"buffer_store_dword v0, v1, s[28:31], s100 offen offset:{4*i}")
            self("v_mov_b32 v0, s98")
            self(f"buffer_store_dword v0, v1, s[28:31], s100 offen offset:{4*N}")
            self("s_getreg_b32 s98, hwreg(HW_REG_XCC_ID)")
            self("v_mov_b32 v0, s98")
            self(f"buffer_store_dword v0, v1, s[28:31], s100 offen offset:{4*N+4}")
        self("s_endpgm")

    def __init__(self):
        self.lines = []
        self.vm = []
        self.lg = []

    def __call__(self, s):
        for l in s.split("\n"):
            l = l.strip()
            if l:
                self.lines.append(("" if l.endswith(":") else "  ") + l)

    def label(self, name):
        self.lines.append(name + ":")

    def comment(self, s):
        self.lines.append("  ; " + s)

    def vmem(self, s, tag):
        self(s)
        self.vm.append(tag)

    def lds(self, s, tag):
        self(s)
        self.lg.append(tag)

    def _need(self, q, tags):
        if isinstance(tags, str):
            tags = [tags]
        last = -1
        for i, t in enumerate(q):
            if t in tags:
                last = i
        return last

    def wait(self, vm=None, lg=None):
        parts = []
        if vm is not None:
            if vm == "all":
                last = len(self.vm) - 1
            else:
                last = self._need(self.vm, vm)
            if last >= 0:
                n = len(self.vm) - 1 - last
                assert n <= 63
                parts.append(f"vmcnt({n})")
                self.vm = self.vm[last + 1:]
        if lg is not None:
            if lg == "all":
                last = len(self.lg) - 1
            else:
                last = self._need(self.lg, lg)
            if last >= 0:
                n = len(self.lg) - 1 - last
                n = min(n, 15)
                parts.append(f"lgkmcnt({n})")
                self.lg = self.lg[len(self.lg) - n:] if n else []
        if parts:
            self("s_waitcnt " + " ".join(parts))

    def srd(self, d, lo, hi, size):
        self(f"s_mov_b32 s{d}, s{lo}")
        self(f"s_mov_b32 s{d+1}, s{hi}")
        self(f"s_mov_b32 s{d+2}, {size}")
        self(f"s_mov_b32 s{d+3}, 0x20000")

    def text(self):
        return "\n".join(self.lines) + "\n"


def vr(a, n):
    return f"v[{a}:{a+n-1}]" if n > 1 else f"v{a}"

def ar(a, n):
    return f"a[{a}:{a+n-1}]" if n > 1 else f"a{a}"

def sr(a, n):
    return f"s[{a}:{a+n-1}]" if n > 1 else f"s{a}"

def f32hex(x):
    import struct
    return "0x%08x" % struct.unpack("<I", struct.pack("<f", x))[0]

def kernel_header(name):
    return f".globl {name}\n.p2align 8\n.type {name},@function\n{name}:\n"

def kernel_desc(name, vgpr, sgpr, accum=None):
    if PROF["on"]:
        sgpr = 102
    if accum is None:
        accum = (vgpr + 3) // 4 * 4
    return f""".p2align 6
.amdhsa_kernel {name}
  .amdhsa_next_free_vgpr {vgpr}
  .amdhsa_next_free_sgpr {sgpr}
  .amdhsa_accum_offset {accum}
  .amdhsa_group_segment_fixed_size 0
  .amdhsa_kernarg_size 96
  .amdhsa_user_sgpr_count 2
  .amdhsa_user_sgpr_kernarg_segment_ptr 1
  .amdhsa_system_sgpr_workgroup_id_x 1
.end_amdhsa_kernel
"""


def inst_size(l):
    import re
    l = l.strip()
    if not l or l.endswith(":") or l.startswith(";") or l.startswith("."):
        return 0
    op = l.split()[0]
    if op.startswith(("buffer_", "ds_", "v_mfma", "s_load", "s_mem", "global_", "v_pk_", "v_cvt_pk", "v_perm", "v_fma_", "v_max3",
                      "v_lshl_add", "v_lshl_or", "v_and_or", "v_add3", "v_bfe", "v_mul_lo", "v_mad", "v_readlane", "v_writelane",
                      "v_accvgpr", "v_dot2", "v_lshrrev_b64", "v_min3", "v_med3", "v_alignbit", "v_add_lshl", "v_xad", "v_or3")):
        return 8
    if op.endswith(("_e64", "_dpp", "_sdwa")):
        return 8
    args = l[len(op):]
    lit = False
    for t in re.findall(r"(?<![\w\[:])-?(?:0x[0-9a-fA-F]+|\d+\.\d+|\d+)(?![\w\]:])", args):
        if op.startswith(("s_waitcnt", "s_nop", "s_setprio", "s_sleep", "s_movk", "s_cbranch", "s_branch", "s_getreg")):
            break
        if "." in t and not t.startswith("0x"):
            continue
        v = int(t, 0)
        if not -16 <= v <= 64:
            lit = True
    if op.startswith("v_cmp") and not args.strip().startswith("vcc"):
        return 8
    if op.startswith("v_cndmask") and not re.match(r"\s*v\d+, [^,]+, v\d+, vcc$", args):
        return 8
    return 8 if lit else 4


def align8(lines, start_off=0):
    out = list(lines)
    off = start_off
    last4 = None
    for i, l in enumerate(out):
        n = inst_size(l)
        if n == 8 and off % 8 == 4 and last4 is not None:
            op = out[last4].split()[0]
            out[last4] = out[last4].replace(op, op + "_e64", 1)
            off += 4
        if n == 8:
            last4 = None
        elif n == 4 and l.strip().startswith(("v_exp_f32 ", "v_rcp_f32 ", "v_mul_f32 ", "v_add_f32 ", "v_mov_b32 ")):
            last4 = i
        off += n
    return out
```

```python
import os, math
from asmlib import *
from playout import *
from k1 import norm2_allhalves
from k2 import wave_allreduce

OPT = set(os.environ.get("PKOPT", "").split(","))

XN_RT = 56 * 528
WQ_L = 2 * XN_RT
WKV_L = WQ_L + 448 * 128
OB_L = 131072
TRASH_L = OB_L + 14336
LX_L = 147456
KM_L = LX_L + 2048
ST_L = KM_L + 64
B1_L = ST_L + 512
PK_LDS = B1_L + 1024
RED_ROW = 452 * 4
RED_PART = 8 * RED_ROW
XN2_L = 0
ACT_L = 57344

XR = 4
Q, O, SB, P, KF, VF = 8, 16, 32, 64, 72, 88
VL16, VKV0, VKV1, MRUN = 104, 105, 106, 107
T0 = 108
WPRE, NPRE, NSTG = 112, 36, 8
WLATE, WSTG = 36, 56
ACC2, BF = 8, 88
SLEEP = int(os.environ.get("PKSLEEP", "2"))
SLEEP0 = int(os.environ.get("PKSLEEP0", "34"))
SPIN = 1 << 20
SPIN2 = 1 << 18


XSCALE = math.sqrt(QSCALE)


def ln_rows(a, X, Fv, T):
    a("s_mov_b32 s34, 0x3f803f80")
    for j in range(28):
        c = "0" if j < 2 else None
        a(f"v_dot2_f32_bf16 v{T+j%2}, v{X+j}, s34, {c or f'v{T+j%2}'}")
        a(f"v_dot2_f32_bf16 v{T+2+j%2}, v{X+j}, v{X+j}, {c or f'v{T+2+j%2}'}")
    a("s_nop 2")
    a(f"v_add_f32 v{T}, v{T}, v{T+1}")
    a(f"v_add_f32 v{T+2}, v{T+2}, v{T+3}")
    for ctl in ("quad_perm:[1,0,3,2]", "quad_perm:[2,3,0,1]", "row_half_mirror"):
        a("s_nop 0")
        a(f"v_add_f32_dpp v{T}, v{T}, v{T} {ctl} row_mask:0xf bank_mask:0xf")
        a(f"v_add_f32_dpp v{T+2}, v{T+2}, v{T+2} {ctl} row_mask:0xf bank_mask:0xf")
    a(f"v_mul_f32 v{T}, {f32hex(-1.0/448)}, v{T}")
    a(f"v_mul_f32 v{T+2}, {f32hex(1.0/448)}, v{T+2}")
    a(f"v_fma_f32 v{T+2}, -v{T}, v{T}, v{T+2}")
    a(f"v_max_f32 v{T+2}, 0, v{T+2}")
    a(f"v_add_f32 v{T+2}, {f32hex(EPS)}, v{T+2}")
    a(f"v_rsq_f32 v{T+4}, v{T+2}")
    def unpack(j):
        f = Fv + 2 * (j % 4)
        a(f"v_lshlrev_b32 v{f}, 16, v{X+j}")
        a(f"v_and_b32 v{f+1}, 0xffff0000, v{X+j}")
    unpack(0)
    a(f"v_mul_f32 v{T+4}, {f32hex(XSCALE)}, v{T+4}")
    unpack(1)
    a(f"v_mul_f32 v{T+6}, v{T}, v{T+4}")
    for j in range(28):
        f = Fv + 2 * (j % 4)
        a(f"v_pk_fma_f32 {vr(f,2)}, {vr(f,2)}, {vr(T+4,2)}, {vr(T+6,2)} op_sel_hi:[1,0,0]")
        if j + 2 < 28:
            unpack(j + 2)
        a(f"v_cvt_pk_bf16_f32 v{X+j}, v{f}, v{f+1}")


def proj_tile(a, wstep, whalf, swap, ACC, VW, VX, FR):
    DEPTH = 5
    def issue(ks):
        b = FR + 8 * (ks % DEPTH)
        a.lds(f"ds_read_b64_tr_b16 {vr(b,2)}, v{VW} offset:{ks*wstep}", f"f{ks}")
        a.lds(f"ds_read_b64_tr_b16 {vr(b+2,2)}, v{VW} offset:{ks*wstep+whalf}", f"f{ks}")
        a.lds(f"ds_read_b128 {vr(b+4,4)}, v{VX} offset:{ks*1056}", f"f{ks}")
    a.lg = []
    for ks in range(DEPTH):
        issue(ks)
    for ks in range(28):
        b = FR + 8 * (ks % DEPTH)
        a.wait(lg=f"f{ks}")
        c = "0" if ks == 0 else vr(ACC, 16)
        if swap:
            a(f"v_mfma_f32_32x32x16_bf16 {vr(ACC,16)}, {vr(b+4,4)}, {vr(b,4)}, {c}")
        else:
            a(f"v_mfma_f32_32x32x16_bf16 {vr(ACC,16)}, {vr(b,4)}, {vr(b+4,4)}, {c}")
        if ks + DEPTH < 28:
            issue(ks + DEPTH)
    a("s_nop 11")


def wreg(f):
    if f < NPRE:
        return WPRE + 4 * f
    if f < NPRE + NSTG:
        return WSTG + 4 * (f - NPRE)
    return WLATE + 4 * (f - NPRE - NSTG)


def xn2_address(a, vdst, vt, sdst):
    a("s_mul_i32 s34, s3, 3584")
    a(f"v_lshrrev_b32 v{vt}, 3, v1")
    a(f"v_lshl_add_u32 v{vt}, v{vt}, 9, s34")
    a(f"v_and_b32 v{vdst}, 7, v1")
    a(f"v_lshl_add_u32 v{vdst}, v{vdst}, 4, v{vt}")
    a("s_mul_i32 s34, s32, 57344")
    a(f"s_lshr_b32 s{sdst}, s33, 2")
    a(f"s_mul_i32 s{sdst}, s{sdst}, 28672")
    a(f"s_add_u32 s{sdst}, s{sdst}, s34")
    a("s_and_b32 s34, s33, 3")
    a("s_lshl_b32 s34, s34, 7")
    a(f"s_add_u32 s{sdst}, s{sdst}, s34")
    a(f"s_add_u32 s{sdst}, s{sdst}, {XN2F_OFF}")


PR, PO, PD = 220, 240, 236


def prep_go(a, lo, size, wait=False):
    a("s_add_u32 s17, s16, s36")
    a("s_add_u32 s18, s17, s36")
    a("s_add_u32 s19, s18, s36")
    a("s_mov_b32 s55, 0x20000")
    a(f"s_mov_b32 s54, {size}")
    if wait:
        a("s_waitcnt lgkmcnt(0)")
    a(f"s_mov_b32 s52, s{lo}")
    a(f"s_mov_b32 s53, s{lo+1}")


def prep_start_w(a, name):
    R = PR
    a("s_lshl_b32 s51, s2, 2")
    a("s_add_u32 s51, s51, s3")
    a("s_sub_u32 s51, s51, 4")
    a("v_and_b32 v2, 31, v1")
    a("v_lshrrev_b32 v3, 5, v1")
    a("s_movk_i32 s36, 3584")
    a("s_cmp_ge_u32 s51, 784")
    a(f"s_cbranch_scc1 L_{name}_pnone")
    a("s_cmp_ge_u32 s51, 392")
    a(f"s_cbranch_scc1 L_{name}_pw2")
    a("s_mul_i32 s34, s51, 4682")
    a("s_lshr_b32 s34, s34, 16")
    a("s_mul_i32 s35, s34, 14")
    a("s_sub_u32 s35, s51, s35")
    a(f"s_mul_i32 s16, s34, {16*3584}")
    a("s_lshl_b32 s37, s35, 8")
    a("s_add_u32 s16, s16, s37")
    a(f"v_mul_u32_u24 v4, {8*3584}, v3")
    a("v_lshl_add_u32 v4, v2, 3, v4")
    a(f"v_add_u32 v5, {4*3584}, v4")
    prep_go(a, 40, W1_BYTES)
    for t in range(8):
        a(f"buffer_load_dwordx2 {vr(R+2*t,2)}, v{4 + t//4}, s[52:55], s{16 + t%4} offen")
    a(f"s_mul_i32 s37, s35, {4*28672}")
    a("s_lshl_b32 s36, s34, 10")
    a("s_add_u32 s37, s37, s36")
    a(f"s_add_u32 s37, s37, {W1F_OFF}")
    a(f"v_add_u32 v{PD}, s37, v7")
    for c in range(1, 4):
        a(f"v_add_u32 v{PD+c}, 28672, v{PD+c-1}")
    a("s_mov_b32 s50, 1")
    a("s_waitcnt vmcnt(8)")
    a(f"s_branch L_{name}_pdone")
    a.label(f"L_{name}_pw2")
    a("s_sub_u32 s51, s51, 392")
    a("s_mul_i32 s34, s51, 9363")
    a("s_lshr_b32 s34, s34, 16")
    a("s_mul_i32 s35, s34, 7")
    a("s_sub_u32 s35, s51, s35")
    a("s_lshr_b32 s38, s34, 2")
    a("s_lshl_b32 s38, s38, 7")
    a("s_and_b32 s37, s34, 3")
    a("s_add_u32 s38, s38, s37")
    a("s_mul_i32 s16, s38, 896")
    a("s_lshl_b32 s38, s35, 7")
    a("s_add_u32 s16, s16, s38")
    a(f"v_mul_u32_u24 v4, {4*3584}, v3")
    a("v_lshl_add_u32 v4, v2, 2, v4")
    a(f"v_add_u32 v5, {8*3584}, v4")
    a(f"v_add_u32 v2, {16*3584}, v4")
    a(f"v_add_u32 v3, {24*3584}, v4")
    prep_go(a, 44, W1_BYTES)
    va = [4, 5, 2, 3]
    for t in range(16):
        a(f"buffer_load_dword v{R+t}, v{va[t//4]}, s[52:55], s{16 + t%4} offen")
    a("s_mul_i32 s36, s34, 147")
    a("s_lshr_b32 s36, s36, 10")
    a("s_mul_i32 s37, s36, 7")
    a("s_sub_u32 s38, s34, s37")
    a("s_add_u32 s37, s37, s35")
    a("s_mul_i32 s37, s37, 7")
    a("s_add_u32 s37, s37, s38")
    a("s_lshl_b32 s37, s37, 12")
    a(f"s_add_u32 s37, s37, {W2F_OFF}")
    a(f"v_add_u32 v{PD}, s37, v7")
    for c in range(1, 4):
        a(f"v_add_u32 v{PD+c}, 1024, v{PD+c-1}")
    a("s_mov_b32 s50, 2")
    a("s_waitcnt vmcnt(16)")
    a(f"s_branch L_{name}_pdone")
    a.label(f"L_{name}_pnone")
    a("s_mov_b32 s50, 0")
    a("s_waitcnt vmcnt(0)")
    a.label(f"L_{name}_pdone")


def prep_start_o(a, name):
    R = PR
    a("s_lshl_b32 s51, s2, 2")
    a("s_add_u32 s51, s51, s3")
    a("s_sub_u32 s51, s51, 4")
    a("s_mov_b32 s50, 0")
    a(f"s_cmp_ge_u32 s51, {896 + 112}")
    a(f"s_cbranch_scc1 L_{name}_onone")
    a(f"s_cmp_ge_u32 s51, {896 + 98}")
    a(f"s_cbranch_scc1 L_{name}_pbias")
    T = PO
    a("v_and_b32 v2, 15, v1")
    a("v_lshrrev_b32 v3, 4, v1")
    a("s_sub_u32 s51, s51, 896")
    a("s_mul_i32 s34, s51, 147")
    a("s_lshr_b32 s34, s34, 10")
    a("s_mul_i32 s35, s34, 7")
    a("s_sub_u32 s35, s51, s35")
    a("s_lshl_b32 s36, s34, 2")
    a(f"v_add_u32 v{T}, s36, v3")
    a(f"v_mul_u32_u24 v{T+1}, 147, v{T}")
    a(f"v_lshrrev_b32 v{T+1}, 10, v{T+1}")
    a(f"v_mul_u32_u24 v{T+2}, 7, v{T+1}")
    a(f"v_sub_u32 v{T}, v{T}, v{T+2}")
    offA = [0, 16, 4, 28, 44, 32, 20]
    tab = sum(o << (8 * i) for i, o in enumerate(offA))
    a(f"s_mov_b32 s36, {tab & 0xffffffff:#x}")
    a(f"s_mov_b32 s37, {tab >> 32:#x}")
    a(f"v_lshlrev_b32 v{T+2}, 3, v{T}")
    a(f"v_lshrrev_b64 v[{T+4}:{T+5}], v{T+2}, s[36:37]")
    a(f"v_and_b32 v{T+4}, 0xff, v{T+4}")
    a(f"v_mul_u32_u24 v{T+1}, 56, v{T+1}")
    a(f"v_add_u32 v{T+4}, v{T+4}, v{T+1}")
    a(f"v_cmp_eq_u32 vcc, 6, v{T}")
    a(f"v_mov_b32 v{T+2}, 28")
    a(f"v_mul_u32_u24 v4, 896, v{T+4}")
    a(f"v_cndmask_b32 v{T+2}, 8, v{T+2}, vcc")
    a("v_lshl_add_u32 v4, v2, 3, v4")
    a(f"v_mul_u32_u24 v{T+2}, 896, v{T+2}")
    a(f"v_add_u32 v5, v4, v{T+2}")
    a("s_lshl_b32 s16, s35, 7")
    a("s_movk_i32 s36, 896")
    prep_go(a, 12, WQ_BYTES)
    for t in range(8):
        a(f"buffer_load_dwordx2 {vr(R+2*t,2)}, v{4 + t//4}, s[52:55], s{16 + t%4} offen")
    a("s_cmp_ge_u32 s34, 7")
    a("s_cselect_b32 s38, 1, 0")
    a("s_mul_i32 s39, s38, 7")
    a("s_sub_u32 s39, s34, s39")
    a("s_mul_i32 s39, s39, 7")
    for c in range(4):
        a("s_lshl_b32 s34, s35, 2")
        a(f"s_add_u32 s34, s34, {c}")
        a("s_mul_i32 s36, s34, 147")
        a("s_lshr_b32 s36, s36, 10")
        a("s_mul_i32 s37, s36, 7")
        a("s_sub_u32 s34, s34, s37")
        a("s_lshl_b32 s36, s36, 1")
        a("s_add_u32 s36, s36, s38")
        a("s_mul_i32 s36, s36, 49")
        a("s_add_u32 s36, s36, s39")
        a("s_add_u32 s36, s36, s34")
        a("s_lshl_b32 s36, s36, 10")
        a(f"s_add_u32 s36, s36, {WOF_OFF}")
        a(f"v_add_u32 v{PD+c}, s36, v7")
    a("s_mov_b32 s50, 1")
    a("s_waitcnt vmcnt(8)")
    a(f"s_branch L_{name}_odone")
    a.label(f"L_{name}_pbias")
    a(f"s_sub_u32 s51, s51, {896 + 98}")
    a("v_lshrrev_b32 v2, 4, v1")
    a("v_bfe_u32 v3, v1, 3, 1")
    a("v_lshl_add_u32 v2, v3, 4, v2")
    a("v_bfe_u32 v3, v1, 1, 2")
    a("v_lshl_add_u32 v2, v3, 5, v2")
    a("v_and_b32 v3, 1, v1")
    a("v_lshl_add_u32 v2, v3, 3, v2")
    a("v_lshlrev_b32 v4, 1, v2")
    a("s_lshl_b32 s16, s51, 8")
    prep_go(a, 42, B1_BYTES)
    for t in range(2):
        a(f"buffer_load_ushort v{R+t}, v4, s[52:55], s16 offen offset:{8*t}")
    a("s_lshl_b32 s37, s51, 9")
    a(f"s_add_u32 s37, s37, {B1F_OFF}")
    a(f"v_lshl_add_u32 v{PD}, v1, 3, s37")
    a("s_mov_b32 s50, 3")
    a("s_waitcnt vmcnt(2)")
    a(f"s_branch L_{name}_odone")
    a.label(f"L_{name}_onone")
    a("s_waitcnt vmcnt(0)")
    a.label(f"L_{name}_odone")


def prep_perm(a, kind):
    R, OO = PR, PO
    for k in range(4):
        for u in range(4):
            if kind == 1:
                a(f"v_perm_b32 v{OO+4*k+u}, v{R+2*(2*u+1)+k//2}, v{R+2*(2*u)+k//2}, s{36 + k%2}")
            else:
                a(f"v_perm_b32 v{OO+4*k+u}, v{R+8*(k//2)+2*u+1}, v{R+8*(k//2)+2*u}, s{36 + k%2}")


def prep_store(a, k):
    a(f"buffer_store_dwordx4 {vr(PO+4*k,4)}, v{PD+k}, s[28:31], 0 offen sc1")


def prep_early(a, name):
    R = PR
    a("s_mov_b32 s36, 0x05040100")
    a("s_mov_b32 s37, 0x07060302")
    a("s_cmp_eq_u32 s50, 0")
    a(f"s_cbranch_scc1 L_{name}_s1")
    a("s_cmp_eq_u32 s50, 3")
    a("s_mov_b32 s50, 0")
    a(f"s_cbranch_scc1 L_{name}_f3")
    prep_perm(a, 1)
    for k in range(4):
        prep_store(a, k)
    a(f"s_branch L_{name}_s1")
    a.label(f"L_{name}_f3")
    a(f"s_mov_b32 s36, {f32hex(LOG2E)}")
    for t in range(2):
        a(f"v_lshlrev_b32 v{R+t}, 16, v{R+t}")
        a(f"v_mul_f32 v{R+t}, s36, v{R+t}")
    a(f"buffer_store_dwordx2 {vr(R,2)}, v{PD}, s[28:31], 0 offen sc1")
    a(f"s_branch L_{name}_s1")


def prep_late_perm(a, name):
    a("s_cmp_eq_u32 s50, 0")
    a(f"s_cbranch_scc1 L_{name}_fdone")
    a("s_mov_b32 s36, 0x05040100")
    a("s_mov_b32 s37, 0x07060302")
    a("s_cmp_eq_u32 s50, 2")
    a(f"s_cbranch_scc1 L_{name}_f2")
    prep_perm(a, 1)
    a(f"s_branch L_{name}_fdone")
    a.label(f"L_{name}_f2")
    prep_perm(a, 2)
    a.label(f"L_{name}_fdone")


def prep_late_store(a, name, ks, lab):
    a("s_cmp_eq_u32 s50, 0")
    a(f"s_cbranch_scc1 L_{name}_ps{lab}")
    for k in ks:
        prep_store(a, k)
    a.label(f"L_{name}_ps{lab}")


VW, VX, VST, VL32 = 105, 106, 107, 108


def proj_addresses(a, name):
    a("v_lshrrev_b32 v2, 4, v1")
    a("v_and_b32 v3, 15, v1")
    a("v_lshrrev_b32 v4, 2, v3")
    a("v_and_b32 v3, 3, v3")
    a(f"v_lshrrev_b32 v{VST}, 1, v2")
    a(f"v_lshl_add_u32 v4, v{VST}, 3, v4")
    a("v_and_b32 v2, 1, v2")
    a("v_lshlrev_b32 v2, 5, v2")
    a("v_lshl_add_u32 v2, v3, 3, v2")
    a(f"v_and_b32 v{VL32}, 31, v1")
    a("v_lshrrev_b32 v3, 5, v1")
    a(f"v_mul_u32_u24 v{VX}, 528, v3")
    a(f"v_lshl_add_u32 v{VX}, v{VL32}, 4, v{VX}")
    a("v_cmp_lt_u32 vcc, 31, v1")
    a("s_lshr_b32 s36, s3, 1")
    a("s_and_b32 s37, s3, 1")
    a("s_cmp_eq_u32 s33, 7")
    a(f"s_cbranch_scc1 L_{name}_akv")
    a(f"s_mul_i32 s38, s36, {XN_RT}")
    a(f"v_add_u32 v{VX}, s38, v{VX}")
    a(f"v_lshrrev_b32 v{VST}, 1, v4")
    a(f"v_xor_b32 v{VST}, s37, v{VST}")
    a(f"v_and_b32 v{VST}, 1, v{VST}")
    a(f"v_lshl_add_u32 v2, v{VST}, 6, v2")
    a(f"v_lshl_add_u32 v{VW}, v4, 7, v2")
    a(f"v_add_u32 v{VW}, {WQ_L}, v{VW}")
    a("s_lshl_b32 s39, s32, 1")
    a("s_add_u32 s39, s39, s36")
    a(f"s_mul_i32 s39, s39, {4*7168}")
    a("s_lshl_b32 s36, s33, 1")
    a("s_add_u32 s36, s36, s37")
    a("s_lshl_b32 s36, s36, 9")
    a("s_add_u32 s39, s39, s36")
    a(f"v_lshrrev_b32 v2, 3, v{VL32}")
    a("v_mul_u32_u24 v2, 7168, v2")
    a(f"v_and_b32 v4, 7, v{VL32}")
    a("v_lshl_add_u32 v2, v4, 4, v2")
    a(f"v_lshl_add_u32 v{VST}, v3, 7, v2")
    a(f"s_branch L_{name}_adone")
    a.label(f"L_{name}_akv")
    a(f"s_mul_i32 s38, s37, {XN_RT}")
    a(f"v_add_u32 v{VX}, s38, v{VX}")
    a(f"v_mul_u32_u24 v{VW}, 56, v4")
    a(f"v_add_u32 v{VW}, v{VW}, v2")
    a("s_mul_i32 s38, s36, 28672")
    a(f"s_add_u32 s38, s38, {WQ_L}")
    a(f"v_add_u32 v{VW}, s38, v{VW}")
    a("s_lshl_b32 s39, s32, 1")
    a("s_add_u32 s39, s39, s37")
    a("s_lshl_b32 s39, s39, 12")
    a(f"s_add_u32 s39, s39, {KVF_OFF}")
    a(f"v_lshlrev_b32 v{VST}, 4, v1")
    a.label(f"L_{name}_adone")


def tag_barrier(a):
    a("s_mul_i32 s48, s48, 0x9E3779B1")
    a("s_add_u32 s48, s48, 0x7F4A7C15")
    a("s_mov_b32 s49, 0")
    a("s_barrier")
    a.stamp(4)


def phase_a(a, name):
    X, Fv, T = 8, 64, 96
    ACC, FR = 8, 40
    a("s_and_b32 s32, s2, 31")
    a("s_lshr_b32 s33, s2, 5")
    a("v_lshlrev_b32 v7, 4, v1")
    a("v_lshlrev_b32 v6, 7, v1")
    a("s_lshr_b32 s36, s2, 3")
    if "nocode" not in OPT:
        a("s_getpc_b64 s[20:21]")
        a.label(f"L_{name}_pc")
        a(f"s_mov_b32 s22, L_{name}_last-L_{name}_pc")
        a("s_mov_b32 s23, 0x20000")
        a("s_lshl_b32 s37, s36, 3")
        a("s_add_u32 s37, s37, s3")
        a("s_lshl_b32 s37, s37, 8")
        a("s_mov_b64 exec, 3")
        a("buffer_load_dword v255, v6, s[20:23], s37 offen")
        a("s_mov_b64 exec, -1")
    a(f"s_mov_b32 s49, {EP_OFF}")
    a("s_cmp_ge_u32 s3, 4")
    a(f"s_cbranch_scc1 L_{name}_ld")
    a("v_lshrrev_b32 v3, 3, v1")
    a("v_and_b32 v4, 7, v1")
    a("v_mul_u32_u24 v5, 896, v3")
    a("v_lshl_add_u32 v5, v4, 4, v5")
    a("s_mul_i32 s35, s32, 57344")
    a(f"s_mul_i32 s34, s3, {16*896}")
    a("s_add_u32 s35, s35, s34")
    a(f"s_add_u32 s34, s35, {8*896}")
    a("s_lshl_b32 s37, s36, 1")
    a("s_add_u32 s37, s37, s3")
    a(f"s_mul_i32 s37, s37, {49*128}")
    a("s_and_b32 s38, s36, 15")
    a(f"s_mul_i32 s38, s38, {13*128}")
    a("s_cmp_ge_u32 s3, 2")
    a("s_cselect_b32 s37, s38, s37")
    a(f"s_mov_b32 s22, {WQ_BYTES}")
    a(f"s_cselect_b32 s22, {WKV_BYTES}, s22")
    a("s_cselect_b32 s38, 0x1fff, -1")
    a("s_cselect_b32 s39, 0, 0x1ffff")
    a(f"s_mul_i32 s51, s2, {13*128}")
    a("s_cmp_eq_u32 s3, 3")
    a(f"s_cselect_b32 s22, {WQ_BYTES}, s22")
    a("s_cselect_b32 s37, s51, s37")
    a("s_mov_b32 s23, 0x20000")
    a(f"s_mov_b32 s18, {X_BYTES}")
    a("s_mov_b32 s19, 0x20000")
    a("s_waitcnt lgkmcnt(0)")
    a.stamp(1)
    def xload():
        a("s_mov_b32 s16, s4")
        a("s_mov_b32 s17, s5")
        for h in range(2):
            for i in range(7):
                a(f"buffer_load_dwordx4 {vr(X+28*h+4*i,4)}, v5, s[16:19], s{35-h} offen offset:{128*i}")

    def touch():
        a("s_cmp_lt_u32 s36, 16")
        a("s_cselect_b32 s20, s8, s10")
        a("s_cselect_b32 s21, s9, s11")
        a("s_cmp_lt_u32 s3, 2")
        a("s_cselect_b32 s20, s6, s20")
        a("s_cselect_b32 s21, s7, s21")
        a("s_cmp_eq_u32 s3, 3")
        a("s_cselect_b32 s20, s12, s20")
        a("s_cselect_b32 s21, s13, s21")
        a("s_mov_b64 exec, s[38:39]")
        a("buffer_load_dword v254, v6, s[20:23], s37 offen")
        a("s_mov_b64 exec, -1")
    TL = 0 if "touchfirst" in OPT else 1
    if TL:
        xload()
        touch()
    else:
        touch()
        xload()
    a(f"s_branch L_{name}_ln")

    a.label(f"L_{name}_ld")
    a("s_sub_u32 s51, s3, 4")
    a(f"s_mul_i32 s24, s51, {14*1024}")
    a(f"s_add_u32 s24, s24, {WQ_L}")
    for c in range(4):
        a(f"v_mov_b32 v{PD+c}, -1")
    a("s_cmp_eq_u32 s33, 7")
    a(f"s_cbranch_scc1 L_{name}_ldkv")
    a("v_lshrrev_b32 v8, 3, v1")
    a("v_and_b32 v9, 7, v1")
    a("v_bfe_u32 v6, v1, 4, 1")
    a("v_lshl_add_u32 v6, v6, 2, v9")
    a("v_and_b32 v6, 7, v6")
    a("v_mul_u32_u24 v10, 896, v8")
    a("v_lshl_add_u32 v6, v6, 4, v10")
    a(f"s_mul_i32 s34, s51, {14*7168}")
    a("s_lshl_b32 s35, s33, 7")
    a("s_add_u32 s34, s34, s35")
    a("s_waitcnt lgkmcnt(0)")
    a.stamp(1)
    a.srd(28, 14, 15, WS_SIZE)
    a("s_load_dword s48, s[14:15], s49")
    a.srd(20, 6, 7, WQ_BYTES)
    a("s_barrier")
    for i in range(14):
        a("s_mov_b32 m0, s24")
        a("s_add_u32 s24, s24, 1024")
        a("buffer_load_dwordx4 v6, s[20:23], s34 offen lds")
        a("s_add_u32 s34, s34, 7168")
    a.stamp(2)
    prep_start_w(a, name)
    a("s_waitcnt lgkmcnt(0)")
    tag_barrier(a)
    a(f"s_branch L_{name}_s1")
    a.label(f"L_{name}_ldkv")
    a("s_waitcnt lgkmcnt(0)")
    a.stamp(1)
    a.srd(28, 14, 15, WS_SIZE)
    a("s_load_dword s48, s[14:15], s49")
    a("s_cmp_lt_u32 s3, 6")
    a("s_cselect_b32 s20, s8, s10")
    a("s_cselect_b32 s21, s9, s11")
    a(f"s_mov_b32 s22, {WKV_BYTES}")
    a("s_mov_b32 s23, 0x20000")
    a("s_barrier")
    a("s_and_b32 s34, s3, 1")
    a(f"s_mul_i32 s34, s34, {14*1024}")
    for i in range(14):
        a("s_mov_b32 m0, s24")
        a("s_add_u32 s24, s24, 1024")
        a("buffer_load_dwordx4 v7, s[20:23], s34 offen lds")
        a("s_add_u32 s34, s34, 1024")
    a.stamp(2)
    prep_start_o(a, name)
    a("s_waitcnt lgkmcnt(0)")
    tag_barrier(a)
    a("s_waitcnt vmcnt(0)")
    a.stamp(3)
    prep_early(a, name)

    a.label(f"L_{name}_ln")
    a("s_mov_b32 s50, 0")
    a("s_load_dword s48, s[14:15], s49")
    a.srd(28, 14, 15, WS_SIZE)
    a.dstamp(10)
    a("s_barrier")
    a.dstamp(11)
    a("v_lshlrev_b32 v2, 9, v3")
    a("v_lshl_add_u32 v2, v4, 4, v2")
    for r in range(4):
        a(f"v_mov_b32 v{140+r}, -1")
    a("s_mul_i32 s38, s32, 57344")
    a("s_lshr_b32 s39, s33, 2")
    a("s_mul_i32 s39, s39, 28672")
    a("s_add_u32 s38, s38, s39")
    a("s_and_b32 s39, s33, 3")
    a("s_lshl_b32 s39, s39, 7")
    a("s_add_u32 s38, s38, s39")
    a(f"s_add_u32 s38, s38, {XN2F_OFF}")
    a("s_mul_i32 s39, s3, 7168")
    a("s_add_u32 s38, s38, s39")
    a("s_add_u32 s39, s38, 3584")
    a("s_mov_b32 exec_hi, 0xffffff")
    a("buffer_store_dwordx4 v[140:143], v2, s[28:31], s38 offen sc1")
    a("buffer_store_dwordx4 v[140:143], v2, s[28:31], s39 offen sc1")
    a("s_mov_b32 exec_hi, -1")
    a("s_lshr_b32 s36, s3, 1")
    a(f"s_mul_i32 s36, s36, {XN_RT}")
    a("s_and_b32 s37, s3, 1")
    a("s_lshl_b32 s37, s37, 8")
    a("s_add_u32 s36, s36, s37")
    a("v_mul_u32_u24 v104, 528, v4")
    a("v_lshl_add_u32 v104, v3, 4, v104")
    a("v_add_u32 v104, s36, v104")
    proj_addresses(a, name)
    for h in range(2):
        if h == 1:
            a.dstamp(12)
        a(f"s_waitcnt vmcnt({9+TL-7*h})")
        if h == 0:
            a.stamp(2)
        else:
            a.dstamp(13)
        ln_rows(a, X + 28 * h, Fv, T)
        for i in range(7):
            a(f"ds_write_b128 v104, {vr(X+28*h+4*i,4)} offset:{4224*i+128*h}")
    a.stamp(3)
    a("s_waitcnt lgkmcnt(0)")
    tag_barrier(a)
    a("s_cmp_eq_u32 s33, 7")
    a(f"s_cbranch_scc1 L_{name}_kv")
    proj_tile(a, 2048, 512, False, ACC, VW, VX, FR)
    for u in range(8):
        a(f"v_cvt_pk_bf16_f32 v{FR+u}, v{ACC+2*u}, v{ACC+2*u+1}")
    a("s_nop 1")
    for u in (0, 1, 4, 5):
        a(f"v_permlane32_swap_b32 v{FR+u}, v{FR+u+2}")
    a("s_nop 1")
    a(f"buffer_store_dwordx4 {vr(FR,4)}, v{VST}, s[28:31], s39 offen sc1")
    a(f"buffer_store_dwordx4 {vr(FR+4,4)}, v{VST}, s[28:31], s39 offen offset:256 sc1")
    a(f"s_branch L_{name}_s1")
    a.label(f"L_{name}_kv")
    a("s_cmp_ge_u32 s3, 2")
    a(f"s_cbranch_scc1 L_{name}_v")
    proj_tile(a, 896, 224, False, ACC, VW, VX, FR)
    for j in range(13, 16):
        a(f"v_cndmask_b32 v{ACC+j}, v{ACC+j}, 0, vcc")
    a(f"v_cndmask_b32 v{FR+8}, v{ACC+12}, 1.0, vcc")
    a(f"v_cndmask_b32 v{ACC+12}, v{ACC+12}, 0, vcc")
    for u in range(8):
        a(f"v_cvt_pk_bf16_f32 v{FR+u}, v{FR+8 if u == 6 else ACC+2*u}, v{ACC+2*u+1}")
    a(f"buffer_store_dwordx4 {vr(FR,4)}, v{VST}, s[28:31], s39 offen sc1")
    a(f"buffer_store_dwordx4 {vr(FR+4,4)}, v{VST}, s[28:31], s39 offen offset:1024 sc1")
    norm2_allhalves(a, ACC, T)
    for ctl in ("quad_perm:[1,0,3,2]", "quad_perm:[2,3,0,1]", "row_half_mirror", "row_mirror"):
        a("s_nop 1")
        a(f"v_max_f32_dpp v{T}, v{T}, v{T} {ctl} row_mask:0xf bank_mask:0xf")
    a("s_nop 1")
    a(f"v_readlane_b32 s36, v{T}, 0")
    a(f"v_readlane_b32 s38, v{T}, 16")
    a("s_max_u32 s49, s36, s38")
    a(f"s_branch L_{name}_s1")
    a.label(f"L_{name}_v")
    a(f"v_cmp_eq_u32 vcc, 28, v{VL32}")
    a("v_mov_b32 v6, 0x3f803f80")
    a("s_nop 0")
    a("v_cndmask_b32 v6, 0, v6, vcc")
    a(f"v_cmp_gt_u32 vcc, 28, v{VL32}")
    proj_tile(a, 896, 224, True, ACC, VW, VX, FR)
    for u in range(8):
        a(f"v_cvt_pk_bf16_f32 v{FR+u}, v{ACC+2*u}, v{ACC+2*u+1}")
    for u in range(8):
        a(f"v_cndmask_b32 v{FR+u}, v6, v{FR+u}, vcc")
    a(f"buffer_store_dwordx4 {vr(FR,4)}, v{VST}, s[28:31], s39 offen offset:2048 sc1")
    a(f"buffer_store_dwordx4 {vr(FR+4,4)}, v{VST}, s[28:31], s39 offen offset:3072 sc1")


def sync1(a, name):
    a.label(f"L_{name}_s1")
    a.srd(16, 4, 5, X_BYTES)
    a.srd(24, 46, 47, X_BYTES)
    a.srd(52, 14, 15, WS_SIZE)
    a("s_cmp_eq_u32 s3, 7")
    a("s_cselect_b32 s54, 0, s54")
    a(f"v_lshlrev_b32 v{VL16}, 4, v1")
    a("s_and_b32 s20, s3, 3")
    a("s_lshr_b32 s21, s3, 2")
    a("s_lshl_b32 s34, s21, 14")
    a(f"v_add_u32 v{VKV0}, s34, v{VL16}")
    a(f"v_add_u32 v{VKV1}, 0x10000, v{VKV0}")
    a("s_lshl_b32 s40, s21, 5")
    a("s_add_u32 s40, s40, s20")
    a("s_lshl_b32 s40, s40, 12")
    a(f"s_add_u32 s40, s40, {KVF_OFF}")
    a("s_lshl_b32 s41, s3, 12")
    a("s_lshl_b32 s43, s32, 3")
    a("s_add_u32 s43, s43, s33")
    a("s_mul_i32 s42, s3, 50176")
    a(f"s_add_u32 s42, s42, {WOF_OFF}")
    a(f"s_add_u32 s22, s42, {NPRE*1024}")
    a(f"s_mul_i32 s44, s43, {8*896}")
    a("s_mul_i32 s34, s3, 112")
    a("s_add_u32 s44, s44, s34")
    a("v_and_b32 v2, 7, v1")
    a("v_mul_u32_u24 v2, 896, v2")
    a("v_lshrrev_b32 v3, 3, v1")
    a("v_lshl_add_u32 v0, v3, 4, v2")
    for r in range(16):
        a(f"v_mov_b32 v{O+r}, 0")
    a(f"v_mov_b32 v{MRUN}, 0")
    a("v_bfe_u32 v2, v1, 3, 2")
    a("s_lshl_b32 s34, s20, 2")
    a("v_add_u32 v2, s34, v2")
    a("v_mul_u32_u24 v2, 7, v2")
    a("v_lshrrev_b32 v3, 5, v1")
    a("v_add_u32 v2, v2, v3")
    a("v_lshrrev_b32 v3, 1, v2")
    a("v_and_b32 v2, 1, v2")
    a("v_lshlrev_b32 v2, 3, v2")
    a("v_lshl_add_u32 v3, v3, 7, v2")
    a("v_and_b32 v2, 7, v1")
    a("v_lshl_add_u32 v3, v2, 4, v3")
    a("v_mov_b32 v32, s48")
    a("v_mov_b32 v33, s49")
    a("v_lshrrev_b32 v2, 1, v1")
    a("v_and_b32 v42, 1, v1")
    a("v_lshlrev_b32 v42, 4, v42")
    a("v_lshl_add_u32 v43, v2, 12, v42")
    a("v_lshrrev_b32 v2, 2, v1")
    a("v_and_b32 v42, 3, v1")
    a("v_lshlrev_b32 v42, 4, v42")
    a("v_lshl_add_u32 v42, v2, 7, v42")
    a("v_mov_b32 v2, 0")
    a("s_lshl_b32 s37, s32, 7")
    a(f"s_add_u32 s37, s37, {FL1_OFF}")
    a(f"s_mov_b32 s36, {FL1_OFF + 224*128}")
    a(f"s_mov_b32 s38, {SPIN}")
    a(f"v_lshlrev_b32 v46, 2, v1")
    a(f"v_add_u32 v46, {ST_L}, v46")
    a.stamp(5)
    a("s_cmp_eq_u32 s33, 7")
    a("s_cselect_b32 s34, 0, s3")
    a("s_cmp_ge_u32 s34, 4")
    a(f"s_cbranch_scc1 L_{name}_s1done")
    a("s_lshl_b32 s34, s2, 7")
    a("s_lshl_b32 s35, s3, 3")
    a("s_add_u32 s34, s34, s35")
    a(f"s_add_u32 s34, s34, {FL1_OFF}")
    a("s_mov_b64 exec, 1")
    a("s_waitcnt vmcnt(0)")
    a.stamp(6)
    a("buffer_store_dwordx2 v[32:33], v2, s[28:31], s34 offen sc1")
    a("s_mov_b64 exec, -1")
    a("s_cmp_lg_u32 s3, 0")
    a(f"s_cbranch_scc1 L_{name}_s1done")
    a("v_mov_b32 v38, s48")
    a("v_mov_b32 v40, s48")
    if SLEEP0:
        a(f"s_sleep {SLEEP0}")
    a.label(f"L_{name}_s1poll")
    a("buffer_load_dwordx4 v[34:37], v42, s[28:31], s36 offen sc1")
    a("buffer_load_dwordx4 v[48:51], v42, s[28:31], s36 offen offset:2048 sc1")
    a("s_mov_b64 exec, 0x3fff")
    a("buffer_load_dwordx4 v[38:41], v43, s[28:31], s37 offen sc1")
    a("s_mov_b64 exec, -1")
    a("s_sub_u32 s38, s38, 1")
    a(f"s_cbranch_scc1 L_{name}_s1out")
    a("s_waitcnt vmcnt(0)")
    a("v_xor_b32 v32, s48, v34")
    a("v_xor_b32 v33, s48, v36")
    a("v_xor_b32 v44, s48, v38")
    a("v_xor_b32 v45, s48, v40")
    a("v_or3_b32 v32, v32, v33, v44")
    a("v_xor_b32 v33, s48, v48")
    a("v_xor_b32 v44, s48, v50")
    a("v_or3_b32 v32, v32, v33, v44")
    a("v_or_b32 v32, v32, v45")
    a("v_cmp_ne_u32 vcc, 0, v32")
    a(f"s_cbranch_vccz L_{name}_s1out")
    a.dstamp(14)
    if SLEEP:
        a(f"s_sleep {SLEEP}")
    a(f"s_branch L_{name}_s1poll")
    a.label(f"L_{name}_s1out")
    a("v_max_f32 v35, v35, v37")
    a("v_max3_f32 v35, v35, v49, v51")
    a("ds_write_b32 v46, v35")
    a("s_waitcnt lgkmcnt(0)")
    a.label(f"L_{name}_s1done")
    a("s_barrier")
    a.stamp(7)
    a.vm = []


def fb_load(a, track):
    a(f"s_mov_b32 s34, {FL2_OFF}")
    a("s_mov_b32 exec_hi, 0xffffff")
    t = f"buffer_load_dwordx4 {vr(T0,4)}, v{VL16}, s[28:31], s34 offen sc1"
    a.vmem(t, "fb") if track else a(t)
    a("s_mov_b32 exec_hi, -1")


def fb_store(a, name, lab):
    a("s_cmp_lg_u32 s3, 0")
    a(f"s_cbranch_scc1 L_{name}_nofb{lab}")
    a("s_lshl_b32 s34, s2, 2")
    a(f"s_add_u32 s34, s34, {FL2_OFF}")
    a("v_mov_b32 v2, 0")
    a("v_mov_b32 v3, s48")
    a("s_mov_b64 exec, 1")
    a("buffer_store_dword v3, v2, s[28:31], s34 offen sc1")
    a("s_mov_b64 exec, -1")
    a.label(f"L_{name}_nofb{lab}")


def fb_test(a):
    a("s_mov_b32 exec_hi, 0xffffff")
    for i in range(4):
        a(f"v_xor_b32 v{T0+i}, s48, v{T0+i}")
    a(f"v_or3_b32 v{T0}, v{T0}, v{T0+1}, v{T0+2}")
    a(f"v_or_b32 v{T0}, v{T0}, v{T0+3}")
    a(f"v_cmp_ne_u32 vcc, 0, v{T0}")
    a("s_mov_b32 exec_hi, -1")


def fb_spin(a, name, lab):
    a(f"s_mov_b32 s38, {SPIN}")
    a.label(f"L_{name}_{lab}")
    fb_load(a, False)
    a("s_waitcnt vmcnt(0)")
    fb_test(a)
    a("s_sub_u32 s38, s38, 1")
    a(f"s_cbranch_scc1 L_{name}_{lab}x")
    a(f"s_cbranch_vccnz L_{name}_{lab}")
    a.label(f"L_{name}_{lab}x")


def b1_stage(a, track):
    a("s_lshl_b32 s34, s45, 7")
    a(f"s_add_u32 s34, s34, {B1F_OFF}")
    a("s_lshl_b32 s35, s3, 7")
    a(f"s_add_u32 m0, s35, {B1_L}")
    a("s_mov_b32 exec_hi, 0")
    t = "buffer_load_dword v3, s[52:55], s34 offen sc1 lds"
    a.vmem(t, "b1") if track else a(t)
    a("s_mov_b32 exec_hi, -1")


def attention(a, name):
    def dma(c):
        a(f"s_add_u32 m0, s41, {(c % 4) * 32768}")
        src = "s40" if c < 8 else "s22"
        a("s_nop 0")
        for f in range(4):
            a.vmem(f"buffer_load_dwordx4 v{VL16}, s[28:31], {src} offen offset:{1024*f} sc1 lds", f"kv{c}")
        a(f"s_add_u32 {src}, {src}, {16384 if c < 8 else 4096}")

    def wload(f):
        if f % 4 == 0 and f > 0:
            a("s_add_u32 s42, s42, 4096")
        a.vmem(f"buffer_load_dwordx4 {vr(wreg(f),4)}, v{VL16}, s[28:31], s42 offen offset:{1024*(f%4)} sc1", f"w{f}")

    a("s_mul_i32 s35, s43, 7168")
    for i in range(4):
        a.vmem(f"buffer_load_dwordx2 {vr(Q+2*i,2)}, v3, s[28:31], s35 offen offset:{128*i} sc1", "q")
    a(f"ds_read_b32 v{T0}, v46")
    dma(0)
    a("s_waitcnt lgkmcnt(0)")
    wave_allreduce(a, "v_max_f32", T0, T0 + 1)
    a(f"v_sqrt_f32 v{T0}, v{T0}")
    a("s_mul_i32 s45, s33, 7")
    a("s_add_u32 s45, s45, s3")
    a(f"v_mul_f32 v{T0}, {f32hex(-1.02)}, v{T0}")
    a("v_lshlrev_b32 v3, 2, v1")
    a("s_mul_i32 s23, s43, 57344")
    a("s_mul_i32 s34, s3, 896")
    a("s_add_u32 s23, s23, s34")
    a(f"s_add_u32 s23, s23, {PART_OFF}")
    a("s_mov_b32 s51, s23")
    a(f"v_mov_b32 v{T0+2}, {f32hex(-M_LIMIT)}")
    a("v_cmp_lt_u32 vcc, 31, v1")
    dma(1)
    a.wait(vm="q")
    prep_late_perm(a, name)
    a(f"v_cndmask_b32 v{Q+6}, v{Q+6}, 0, vcc")
    a(f"v_cndmask_b32 v{Q+7}, v{Q+7}, 0, vcc")
    for i in range(8):
        a(f"v_dot2_f32_bf16 v{SB+i%2}, v{Q+i}, v{Q+i}, {'0' if i < 2 else f'v{SB+i%2}'}")
    a("s_nop 2")
    a(f"v_add_f32 v{T0+1}, v{SB}, v{SB+1}")
    a(f"v_mov_b32 v{SB}, v{T0+1}")
    a("s_nop 1")
    a(f"v_permlane32_swap_b32 v{T0+1}, v{SB}")
    a("s_nop 1")
    a(f"v_add_f32 v{T0+1}, v{T0+1}, v{SB}")
    a(f"v_sqrt_f32 v{T0+1}, v{T0+1}")
    a("s_nop 0")
    a(f"v_mul_f32 v{T0}, v{T0}, v{T0+1}")
    a(f"v_cmp_nge_f32 s[46:47], v{T0}, v{T0+2}")
    a(f"v_lshrrev_b32 v{T0}, 16, v{T0}")
    a("s_nop 2")
    a("s_cmp_lg_u32 s47, 0")
    a(f"s_cbranch_scc1 L_{name}_slow")
    a(f"v_cndmask_b32 v{Q+6}, v{Q+6}, v{T0}, vcc")
    for r in range(4):
        a(f"v_mov_b32 v{T0+r}, -1")

    def kvaddr(i, frag):
        c, t = divmod(i, 4)
        slot = c % 4
        base = VKV0 if slot < 2 else VKV1
        return f"v{base} offset:{(slot % 2) * 32768 + t * 4096 + frag * 1024}"

    def readK(i):
        b = KF + 8 * (i % 2)
        a.lds(f"ds_read_b128 {vr(b,4)}, {kvaddr(i,0)}", f"k{i}")
        a.lds(f"ds_read_b128 {vr(b+4,4)}, {kvaddr(i,1)}", f"k{i}")

    def readV(i):
        b = VF + 8 * (i % 2)
        a.lds(f"ds_read_b128 {vr(b,4)}, {kvaddr(i,2)}", f"v{i}")
        a.lds(f"ds_read_b128 {vr(b+4,4)}, {kvaddr(i,3)}", f"v{i}")

    def qk(i, m):
        s = SB + 16 * (i % 2)
        k = KF + 8 * (i % 2) + 4 * m
        c = "0" if m == 0 else vr(s, 16)
        a(f"v_mfma_f32_32x32x16_bf16 {vr(s,16)}, {vr(k,4)}, {vr(Q+4*m,4)}, {c}")

    def pv(i, m):
        v = VF + 8 * (i % 2) + 4 * m
        a(f"v_mfma_f32_32x32x16_bf16 {vr(O,16)}, {vr(v,4)}, {vr(P+4*m,4)}, {vr(O,16)}")

    def ex(i, r):
        s = SB + 16 * (i % 2) + r
        a(f"v_exp_f32 v{s}, v{s}")

    def cv(i, u):
        s = SB + 16 * (i % 2) + 2 * u
        a(f"v_cvt_pk_bf16_f32 v{P+u}, v{s}, v{s+1}")

    a.wait(vm="kv0")
    a("s_barrier")
    a.stamp(8)
    readK(0)
    readK(1)
    readV(0)
    a.wait(lg="k0")
    qk(0, 0)
    qk(0, 1)
    a("s_nop 7")
    a("s_nop 3")
    wq = list(range(NPRE))
    NT = 32
    for i in range(NT):
        c = i // 4
        if i % 4 == 2 and c + 1 <= 7:
            a.wait(vm=f"kv{c+1}")
            a("s_barrier")
            if c + 2 <= 7:
                dma(c + 2)
            if c >= 5:
                dma(c + 3)
            if i == 22:
                fb_store(a, name, "f")
        a(f"s_setprio {3 - (i + 2) % 4}")
        if i + 1 < NT:
            a.wait(lg=f"k{i+1}")
            qk(i + 1, 0)
        ex(i, 0)
        if i + 2 < NT:
            readK(i + 2)
        for r in range(1, 5):
            ex(i, r)
        if i > 0:
            pv(i - 1, 1)
        ex(i, 5)
        if i + 1 < NT:
            readV(i + 1)
        ex(i, 6)
        ex(i, 7)
        for u in range(4):
            cv(i, u)
        if i + 1 < NT:
            qk(i + 1, 1)
        ex(i, 8)
        if i == 0:
            a.vmem(f"buffer_load_dwordx4 {vr(XR,4)}, v0, s[16:19], s44 offen", "x")
        if i == 1:
            b1_stage(a, True)
        if i >= 3 and wq:
            wload(wq.pop(0))
            if i % 4 in (0, 1) and wq:
                wload(wq.pop(0))
        if i % 4 == 1 and "noclr" not in OPT:
            a("s_mov_b32 exec_hi, 0xffffff")
            a.vmem(f"buffer_store_dwordx4 {vr(T0,4)}, v{VL16}, s[28:31], s51 offen sc1", "clr")
            a("s_add_u32 s51, s51, 7168")
            a("s_mov_b32 exec_hi, -1")
        if i % 4 == 3 and i < 16:
            prep_late_store(a, name, [i // 4], i)
        if i == 29:
            fb_load(a, True)
        for r in range(9, 13):
            ex(i, r)
        a.wait(lg=f"v{i}")
        pv(i, 0)
        for r in range(13, 16):
            ex(i, r)
        for u in range(4, 8):
            cv(i, u)
    assert not wq
    a("s_setprio 0")
    a("s_nop 0")
    pv(NT - 1, 1)
    a.wait(vm="fb")
    fb_test(a)
    a(f"s_cbranch_vccnz L_{name}_fbwait")
    a.label(f"L_{name}_join")
    a.stamp(9)
    a("s_add_u32 s42, s42, 8192")
    for f in range(NPRE + NSTG, 49):
        wload(f)
    return wload


def slow_path(a, name):
    a.label(f"L_{name}_slow")
    a(f"buffer_load_dwordx4 {vr(XR,4)}, v0, s[16:19], s44 offen")
    b1_stage(a, False)
    prep_late_store(a, name, range(4), "s")
    a(f"v_mov_b32 v{MRUN}, {f32hex(-3.0e38)}")
    a("s_mov_b32 s37, 0")
    a("s_movk_i32 s39, 0x4000")
    a.label(f"L_{name}_sloop")
    a("s_waitcnt vmcnt(0)")
    a("s_barrier")
    a("s_cmp_eq_u32 s37, 6")
    a("s_cselect_b32 s40, s22, s40")
    a("s_cselect_b32 s39, 0x1000, s39")
    a(f"s_cbranch_scc0 L_{name}_snofb")
    fb_store(a, name, "s")
    a.label(f"L_{name}_snofb")
    a("s_add_u32 s34, s37, 2")
    a("s_and_b32 s34, s34, 3")
    a("s_lshl_b32 s34, s34, 15")
    a("s_add_u32 m0, s41, s34")
    a("s_nop 0")
    for f in range(4):
        a(f"buffer_load_dwordx4 v{VL16}, s[28:31], s40 offen offset:{1024*f} sc1 lds")
    a("s_add_u32 s40, s40, s39")
    a("s_and_b32 s34, s37, 3")
    a("s_lshl_b32 s34, s34, 15")
    a(f"v_add_u32 v2, s34, v{VKV0}")
    a("s_mov_b32 s46, 0")
    a.label(f"L_{name}_stile")
    a(f"ds_read_b128 {vr(KF,4)}, v2")
    a(f"ds_read_b128 {vr(KF+4,4)}, v2 offset:1024")
    a(f"ds_read_b128 {vr(VF,4)}, v2 offset:2048")
    a(f"ds_read_b128 {vr(VF+4,4)}, v2 offset:3072")
    a("v_add_u32 v2, 4096, v2")
    a("s_waitcnt lgkmcnt(0)")
    a(f"v_mfma_f32_32x32x16_bf16 {vr(SB,16)}, {vr(KF,4)}, {vr(Q,4)}, 0")
    a(f"v_mfma_f32_32x32x16_bf16 {vr(SB,16)}, {vr(KF+4,4)}, {vr(Q+4,4)}, {vr(SB,16)}")
    a("s_nop 15")
    a(f"v_max3_f32 v{T0}, v{SB}, v{SB+1}, v{MRUN}")
    for r in range(2, 16, 2):
        a(f"v_max3_f32 v{T0}, v{SB+r}, v{SB+r+1}, v{T0}")
    a(f"v_mov_b32 v{T0+1}, v{T0}")
    a("s_nop 1")
    a(f"v_permlane32_swap_b32 v{T0}, v{T0+1}")
    a("s_nop 1")
    a(f"v_max_f32 v{T0}, v{T0}, v{T0+1}")
    a(f"v_sub_f32 v{T0+2}, v{MRUN}, v{T0}")
    a(f"v_exp_f32 v{T0+2}, v{T0+2}")
    a(f"v_mov_b32 v{MRUN}, v{T0}")
    for r in range(16):
        a(f"v_sub_f32 v{SB+r}, v{SB+r}, v{T0}")
        a(f"v_mul_f32 v{O+r}, v{O+r}, v{T0+2}")
    for r in range(16):
        a(f"v_exp_f32 v{SB+r}, v{SB+r}")
    a("s_nop 0")
    for u in range(8):
        a(f"v_cvt_pk_bf16_f32 v{P+u}, v{SB+2*u}, v{SB+2*u+1}")
    a("s_nop 1")
    a(f"v_mfma_f32_32x32x16_bf16 {vr(O,16)}, {vr(VF,4)}, {vr(P,4)}, {vr(O,16)}")
    a(f"v_mfma_f32_32x32x16_bf16 {vr(O,16)}, {vr(VF+4,4)}, {vr(P+4,4)}, {vr(O,16)}")
    a("s_nop 15")
    a("s_add_u32 s46, s46, 1")
    a("s_cmp_lt_u32 s46, 4")
    a(f"s_cbranch_scc1 L_{name}_stile")
    a("s_add_u32 s37, s37, 1")
    a("s_cmp_lt_u32 s37, 8")
    a(f"s_cbranch_scc1 L_{name}_sloop")
    for f in range(NPRE):
        if f % 4 == 0 and f > 0:
            a("s_add_u32 s42, s42, 4096")
        a(f"buffer_load_dwordx4 {vr(wreg(f),4)}, v{VL16}, s[28:31], s42 offen offset:{1024*(f%4)} sc1")
    for r in range(4):
        a(f"v_mov_b32 v{T0+r}, -1")
    a("s_mov_b32 exec_hi, 0xffffff")
    for _ in range(8):
        a(f"buffer_store_dwordx4 {vr(T0,4)}, v{VL16}, s[28:31], s51 offen sc1")
        a("s_add_u32 s51, s51, 7168")
    a("s_mov_b32 exec_hi, -1")
    a.label(f"L_{name}_fbwait")
    fb_spin(a, name, "fbs")
    a(f"s_branch L_{name}_join")


HX = 8
W1R = WPRE
A0, A1, BR, MU, PK = 16, 32, 48, 64, 80
NW2E = 12


def w2reg(q):
    if q < 4:
        return 88 + 4 * q
    if q < NW2E:
        return 224 + 4 * (q - 4)
    return W1R + 4 * (q - NW2E)


def el(e):
    return HX + 2 * (e % 4) + e // 4


def w1load(a, ks):
    if ks % 4 == 0 and ks > 0:
        a("s_add_u32 s45, s45, 4096")
    a.vmem(f"buffer_load_dwordx4 {vr(W1R+4*ks,4)}, v{VL16}, s[52:55], s45 offen offset:{1024*(ks%4)} sc1", f"a{ks}")


def epilogue(a, name):
    a("s_mul_i32 s47, s45, 28672")
    a(f"s_add_u32 s45, s47, {W1F_OFF}")
    a(f"s_add_u32 s47, s47, {W2F_OFF}")
    a("v_and_b32 v2, 31, v1")
    a("s_lshl_b32 s34, s3, 8")
    a(f"s_add_u32 s34, s34, {LX_L}")
    a("v_lshl_add_u32 v3, v2, 3, s34")
    a(f"v_add_u32 v{VKV1}, s41, v{VL16}")
    a(f"v_mov_b32 v{T0}, v{O+12}")
    a(f"v_mov_b32 v{T0+1}, v{O+12}")
    a("s_nop 1")
    a(f"v_permlane32_swap_b32 v{T0}, v{T0+1}")
    a("s_nop 0")
    a(f"v_mov_b32 v{T0}, v{MRUN}")
    a(f"ds_write_b64 v3, {vr(T0,2)}")
    a("v_xor_b32 v3, 1024, v3")
    a.wait(vm="kv9")
    for f in range(NSTG):
        a(f"ds_read_b128 {vr(WSTG+4*f,4)}, v{VKV1} offset:{(f//4)*32768 + (f%4)*1024}")
    a("s_waitcnt lgkmcnt(8)")
    a("s_barrier")
    a(f"ds_read_b64 {vr(T0+2,2)}, v3")
    a("v_lshrrev_b32 v3, 3, v2")
    a("s_lshl_b32 s34, s20, 1")
    a(f"v_lshrrev_b32 v{VKV0}, 1, v3")
    a(f"v_add_u32 v{VKV0}, s34, v{VKV0}")
    a(f"v_mul_u32_u24 v{VKV0}, 7, v{VKV0}")
    a("v_and_b32 v3, 1, v3")
    a("v_and_b32 v2, 7, v2")
    a("s_lshl_b32 s34, s21, 7")
    a(f"s_add_u32 s34, s34, {OB_L}")
    a("v_lshl_add_u32 v2, v2, 4, s34")
    a(f"v_lshl_add_u32 v2, v{VKV0}, 8, v2")
    a(f"v_mul_u32_u24 v{VKV0}, 768, v3")
    a(f"v_add_u32 v{VKV0}, v{VKV0}, v2")
    a(f"v_lshl_add_u32 v2, v3, 3, v2")
    a(f"v_add_u32 v2, {6*256}, v2")
    a("v_cmp_lt_u32 vcc, 31, v1")
    a(f"v_add_u32 v3, 256, v{VKV0}")
    a(f"v_add_u32 v{VKV1}, 512, v{VKV0}")
    a(f"v_cndmask_b32 v{VKV0}, v{VKV0}, v{VKV1}, vcc")
    a("v_cndmask_b32 v2, v3, v2, vcc")
    a("v_add_u32 v3, 8, v3")
    a(f"v_add_u32 v{VKV1}, {TRASH_L}, v{VL16}")
    a(f"v_cndmask_b32 v3, v3, v{VKV1}, vcc")
    a("s_waitcnt lgkmcnt(0)")
    a(f"v_max_f32 v{MRUN}, v{T0}, v{T0+2}")
    a(f"v_sub_f32 v{T0}, v{T0}, v{MRUN}")
    a(f"v_sub_f32 v{T0+2}, v{T0+2}, v{MRUN}")
    a(f"v_exp_f32 v{T0}, v{T0}")
    a(f"v_exp_f32 v{T0+2}, v{T0+2}")
    a(f"v_mul_f32 v{T0+1}, v{T0+1}, v{T0}")
    a(f"v_fmac_f32 v{T0+1}, v{T0+3}, v{T0+2}")
    a(f"v_rcp_f32 v{T0+1}, v{T0+1}")
    a(f"v_mul_f32 v{T0}, {f32hex(1.0/XSCALE)}, v{T0}")
    a(f"v_mul_f32 v{T0}, v{T0}, v{T0+1}")
    for j in range(8):
        a(f"v_pk_mul_f32 {vr(O+2*j,2)}, {vr(O+2*j,2)}, {vr(T0,2)} op_sel_hi:[1,0]")
    for u in range(8):
        a(f"v_cvt_pk_bf16_f32 v{Q+u}, v{O+2*u}, v{O+2*u+1}")
    a(f"ds_write_b128 v{VKV0}, {vr(Q,4)}")
    a(f"ds_write_b64 v2, {vr(Q+4,2)}")
    a(f"ds_write_b64 v3, {vr(Q+6,2)}")
    a("s_and_b32 s34, s3, 1")
    a("s_mul_i32 s35, s34, 7168")
    a(f"s_add_u32 s35, s35, {OB_L}")
    a(f"v_add_u32 v2, s35, v{VL16}")
    a("s_waitcnt lgkmcnt(0)")
    a("s_barrier")
    a.stamp(10)
    a.lg = []

    def readB(ks):
        a.lds(f"ds_read_b128 {vr(BF+4*(ks%4),4)}, v2 offset:{1024*ks}", f"b{ks}")
    for ks in range(4):
        readB(ks)
    nw1 = 0
    for ks in range(7):
        a.wait(lg=f"b{ks}")
        for nt in range(7):
            f = ks * 7 + nt
            a.wait(vm=f"w{f}")
            c = "0" if ks == 0 else vr(ACC2 + 4 * nt, 4)
            a(f"v_mfma_f32_16x16x32_bf16 {vr(ACC2+4*nt,4)}, {vr(wreg(f),4)}, {vr(BF+4*(ks%4),4)}, {c}")
            if ks >= 1 and nt in (1, 4) or ks >= 5 and nt == 6:
                w1load(a, nw1)
                nw1 += 1
        if ks + 4 < 7:
            readB(ks + 4)
    a("v_and_b32 v2, 15, v1")
    a(f"v_mul_u32_u24 v2, {RED_ROW}, v2")
    a("v_lshrrev_b32 v3, 4, v1")
    a("v_lshl_add_u32 v2, v3, 4, v2")
    a(f"s_mul_i32 s35, s34, {2*RED_PART}")
    a("s_lshr_b32 s36, s3, 1")
    a("s_mul_i32 s36, s36, 448")
    a("s_add_u32 s35, s35, s36")
    a("v_add_u32 v2, s35, v2")
    a("s_nop 4")
    for nt in range(7):
        a(f"ds_write_b128 v2, {vr(ACC2+4*nt,4)} offset:{64*nt}")
    a("s_mul_i32 s35, s3, 7")
    a("v_lshrrev_b32 v3, 3, v1")
    a("v_add_u32 v3, s35, v3")
    a("v_and_b32 v36, 7, v1")
    a(f"v_mul_u32_u24 v2, {RED_ROW}, v36")
    a("v_lshrrev_b32 v37, 3, v3")
    a("v_lshl_add_u32 v2, v37, 8, v2")
    a("v_and_b32 v37, 7, v3")
    a("v_lshl_add_u32 v2, v37, 3, v2")
    xn2_address(a, VKV0, 3, 36)
    a(f"v_lshlrev_b32 v{VKV1}, 6, v36")
    a(f"v_add_u32 v{VKV1}, {ST_L}, v{VKV1}")
    a("v_cmp_gt_u32 vcc, 56, v1")
    a("s_waitcnt lgkmcnt(0)")
    a.stamp(11)
    a("s_barrier")
    R = 40
    for part in range(4):
        for c in range(4):
            a(f"ds_read_b64 {vr(R+8*part+2*c,2)}, v2 offset:{part*RED_PART + 64*c}")
    for c in range(4):
        src0, src1 = XR + c // 2, XR + 2 + c // 2
        if c % 2 == 0:
            a(f"v_lshlrev_b32 v{HX+2*c}, 16, v{src0}")
            a(f"v_lshlrev_b32 v{HX+2*c+1}, 16, v{src1}")
        else:
            a(f"v_and_b32 v{HX+2*c}, 0xffff0000, v{src0}")
            a(f"v_and_b32 v{HX+2*c+1}, 0xffff0000, v{src1}")
    a("v_lshrrev_b32 v3, 5, v1")
    a(f"v_lshl_add_u32 v3, v3, 5, v{VKV1}")
    a("s_lshl_b32 s35, s3, 2")
    a("v_add_u32 v3, s35, v3")
    for part in range(4):
        a(f"s_waitcnt lgkmcnt({12-4*part})")
        for c in range(4):
            a(f"v_pk_add_f32 {vr(HX+2*c,2)}, {vr(HX+2*c,2)}, {vr(R+8*part+2*c,2)}")
    TT = 16
    a(f"v_pk_add_f32 {vr(TT,2)}, {vr(HX,2)}, {vr(HX+2,2)}")
    a(f"v_pk_mul_f32 {vr(TT+2,2)}, {vr(HX,2)}, {vr(HX,2)}")
    a(f"v_pk_add_f32 {vr(TT,2)}, {vr(TT,2)}, {vr(HX+4,2)}")
    a(f"v_pk_fma_f32 {vr(TT+2,2)}, {vr(HX+2,2)}, {vr(HX+2,2)}, {vr(TT+2,2)}")
    a(f"v_pk_add_f32 {vr(TT,2)}, {vr(TT,2)}, {vr(HX+6,2)}")
    a(f"v_pk_fma_f32 {vr(TT+2,2)}, {vr(HX+4,2)}, {vr(HX+4,2)}, {vr(TT+2,2)}")
    a(f"v_add_f32 v{TT}, v{TT}, v{TT+1}")
    a(f"v_pk_fma_f32 {vr(TT+2,2)}, {vr(HX+6,2)}, {vr(HX+6,2)}, {vr(TT+2,2)}")
    a(f"v_cndmask_b32 v{TT}, 0, v{TT}, vcc")
    a(f"v_add_f32 v{TT+2}, v{TT+2}, v{TT+3}")
    a(f"v_cndmask_b32 v{TT+1}, 0, v{TT+2}, vcc")
    a("s_nop 1")
    a(f"v_permlane32_swap_b32 v{TT}, v{TT+1}")
    a("s_nop 1")
    a(f"v_add_f32 v{TT}, v{TT}, v{TT+1}")
    a(f"v_mov_b32 v{TT+1}, v{TT}")
    a("s_nop 1")
    a(f"v_permlane16_swap_b32 v{TT}, v{TT+1}")
    a("s_nop 1")
    a(f"v_add_f32 v{TT}, v{TT}, v{TT+1}")
    a("s_nop 1")
    a(f"v_add_f32_dpp v{TT}, v{TT}, v{TT} row_ror:8 row_mask:0xf bank_mask:0xf")
    a(f"ds_write_b32 v3, v{TT}")
    a("s_mul_i32 s35, s32, 57344")
    a("s_mul_i32 s37, s3, 7168")
    a("s_add_u32 s40, s35, s37")
    a(f"s_add_u32 s40, s40, {XN2F_OFF}")
    a("s_waitcnt lgkmcnt(0)")
    a("s_barrier")
    for i in range(4):
        a(f"ds_read_b128 {vr(R+4*i,4)}, v{VKV1} offset:{16*i}")
    a(f"v_mov_b32 v{TT+3}, {f32hex(EPS)}")
    a("s_waitcnt lgkmcnt(0)")
    a(f"v_pk_add_f32 {vr(R,2)}, {vr(R,2)}, {vr(R+2,2)}")
    a(f"v_pk_add_f32 {vr(R+8,2)}, {vr(R+8,2)}, {vr(R+10,2)}")
    a(f"v_pk_add_f32 {vr(R+4,2)}, {vr(R+4,2)}, {vr(R+6,2)}")
    a(f"v_pk_add_f32 {vr(R+12,2)}, {vr(R+12,2)}, {vr(R+14,2)}")
    a(f"v_pk_add_f32 {vr(R,2)}, {vr(R,2)}, {vr(R+4,2)}")
    a(f"v_pk_add_f32 {vr(R+8,2)}, {vr(R+8,2)}, {vr(R+12,2)}")
    a(f"v_add_f32 v{R}, v{R}, v{R+1}")
    a(f"v_add_f32 v{R+8}, v{R+8}, v{R+9}")
    a(f"v_mul_f32 v{TT}, {f32hex(-1.0/448)}, v{R}")
    a(f"v_mul_f32 v{TT+1}, {f32hex(1.0/448)}, v{R+8}")
    a(f"v_fma_f32 v{TT+1}, -v{TT}, v{TT}, v{TT+1}")
    a(f"v_max_f32 v{TT+1}, 0, v{TT+1}")
    a(f"v_add_f32 v{TT+1}, v{TT+1}, v{TT+3}")
    a(f"v_rsq_f32 v{TT+2}, v{TT+1}")
    a("s_nop 0")
    a(f"v_mul_f32 v{TT+2}, {f32hex(LOG2E)}, v{TT+2}")
    for c in range(4):
        a(f"v_pk_add_f32 {vr(R+2*c,2)}, {vr(HX+2*c,2)}, {vr(TT,2)} op_sel_hi:[1,0]")
    for c in range(4):
        a(f"v_pk_mul_f32 {vr(R+2*c,2)}, {vr(R+2*c,2)}, {vr(TT+2,2)} op_sel_hi:[1,0]")
    for u in range(4):
        a(f"v_cvt_pk_bf16_f32 v{R+8+u}, v{el(2*u)-HX+R}, v{el(2*u+1)-HX+R}")
    a("s_mov_b64 exec, vcc")
    a.vmem(f"buffer_store_dwordx4 {vr(R+8,4)}, v{VKV0}, s[28:31], s36 offen sc1", "xs")
    a("s_mov_b64 exec, -1")
    a.stamp(12)
    a("s_barrier")
    while nw1 < 28:
        w1load(a, nw1)
        nw1 += 1


def mish_ops(acc, half, u, pk):
    e, w = acc + 8 * half, u + 8
    ops = []
    ops += [f"v_exp_f32 v{u+r}, v{e+r}" for r in range(8)]
    ops += [f"v_fma_f32 v{w+r}, v{u+r}, 0.5, 1.0" for r in range(8)]
    ops += [f"v_fma_f32 v{w+r}, v{u+r}, v{w+r}, 1.0" for r in range(8)]
    ops += [f"v_rcp_f32 v{w+r}, v{w+r}" for r in range(8)]
    ops += [f"v_fma_f32 v{u+r}, -v{e+r}, v{w+r}, v{e+r}" for r in range(8)]
    ops += [f"v_cvt_pk_bf16_f32 v{pk+r}, v{u+2*r}, v{u+2*r+1}" for r in range(4)]
    return ops


def ffn(a, name):
    VA, VP = VKV0, VKV1
    a("s_mul_i32 s35, s3, 7168")
    a("s_add_u32 s41, s40, 4096")
    a(f"v_add_u32 v{VA}, s35, v{VL16}")
    a("v_lshrrev_b32 v3, 5, v1")
    a("v_lshlrev_b32 v3, 6, v3")
    a("s_lshl_b32 s34, s3, 7")
    a(f"s_add_u32 s34, s34, {B1_L}")
    a("v_add_u32 v3, s34, v3")
    for i in range(4):
        a(f"ds_read_b128 {vr(A1+4*i,4)}, v3 offset:{16*i}")
    a(f"s_mov_b32 s36, {SPIN2}")
    a.wait(vm="xs")
    a.stamp(13)

    def xdma(track):
        a("s_mov_b32 m0, s35")
        a("s_nop 0")
        for f in range(7):
            if f == 4:
                a("s_add_u32 m0, s35, 4096")
                a("s_nop 0")
            t = f"buffer_load_dwordx4 v{VL16}, s[28:31], s{40 + f//4} offen offset:{1024*(f%4)} sc1 lds"
            a.vmem(t, "xn") if track else a(t)
    xdma(True)

    def w2load(q):
        if q % 4 == 0 and q > 0:
            a("s_add_u32 s47, s47, 4096")
        a.vmem(f"buffer_load_dwordx4 {vr(w2reg(q),4)}, v{VL16}, s[52:55], s47 offen offset:{1024*(q%4)} sc1", f"c{q}")
    for q in range(NW2E):
        w2load(q)
    a("v_bfe_u32 v3, v1, 3, 2")
    a(f"v_mul_u32_u24 v{VP}, 57344, v3")
    a("v_lshrrev_b32 v3, 5, v1")
    a(f"v_lshl_add_u32 v{VP}, v3, 7, v{VP}")
    a("v_and_b32 v3, 7, v1")
    a(f"v_lshl_add_u32 v{VP}, v3, 4, v{VP}")
    a("s_lshl_b32 s38, s32, 6")
    a("s_add_u32 s38, s38, s33")
    a("s_mul_i32 s38, s38, 7168")
    a("s_lshl_b32 s39, s3, 10")
    a("s_add_u32 s38, s38, s39")
    a(f"s_add_u32 s38, s38, {PART_OFF}")
    a(f"s_add_u32 s39, s38, {4*57344}")
    a.wait(vm="xn")
    a.label(f"L_{name}_xchk")
    CK = 48
    for f in range(7):
        a(f"ds_read_b128 {vr(CK+4*f,4)}, v{VA} offset:{1024*f}")
    for f in range(7):
        a(f"s_waitcnt lgkmcnt({6-f})")
        a(f"v_max3_u32 v2, v{CK+4*f}, v{CK+4*f+1}, {'0' if f == 0 else 'v2'}")
        a(f"v_max3_u32 v2, v{CK+4*f+2}, v{CK+4*f+3}, v2")
    a("v_cmp_eq_u32 vcc, -1, v2")
    a(f"s_cbranch_vccz L_{name}_xok")
    a("s_cmp_eq_u32 s36, 0")
    a(f"s_cbranch_scc1 L_{name}_xok")
    a("s_sub_u32 s36, s36, 1")
    xdma(False)
    a("s_waitcnt vmcnt(0)")
    a(f"s_branch L_{name}_xchk")
    a.label(f"L_{name}_xok")
    a(f"v_add_u32 v{VA}, {ACT_L}, v{VL16}")
    a("s_lshl_b32 s34, s3, 11")
    a(f"v_add_u32 v2, s34, v{VA}")
    a("s_barrier")
    a.stamp(14)
    a("s_cmp_eq_u32 s3, 7")
    a(f"s_cbranch_scc1 L_{name}_idle7")
    vm_save = list(a.vm)
    a.lg = []

    def readX(n):
        a.lds(f"ds_read_b128 {vr(BR+4*(n%4),4)}, v{VL16} offset:{XN2_L + 1024*n}", f"x{n}")
    for n in range(4):
        readX(n)
    fill = []
    for h in range(2):
        fill += mish_ops(A0, h, MU, PK + 4 * h) + [("w", h)]
    for n in range(56):
        mt, ks = divmod(n, 28)
        acc = vr(A0 if mt == 0 else A1, 16)
        a.wait(lg=f"x{n}")
        a(f"v_mfma_f32_32x32x16_bf16 {acc}, {vr(W1R+4*ks,4)}, {vr(BR+4*(n%4),4)}, {vr(A1,16) if n == 0 else acc}")
        if n + 4 < 56:
            readX(n + 4)
        if mt == 1 and NW2E + ks < 28:
            w2load(NW2E + ks)
        if mt == 1 and ks >= 2:
            budget = 22
            while fill and budget > 0:
                op = fill.pop(0)
                if isinstance(op, tuple):
                    a("s_nop 0")
                    a.lds(f"ds_write_b128 v2, {vr(PK+4*op[1],4)} offset:{1024*op[1]}", "aw")
                else:
                    a(op)
                    budget -= 8 if op.startswith(("v_exp", "v_rcp")) else 4
    while fill:
        op = fill.pop(0)
        if isinstance(op, tuple):
            a("s_nop 0")
            a.lds(f"ds_write_b128 v2, {vr(PK+4*op[1],4)} offset:{1024*op[1]}", "aw")
        else:
            a(op)
    a("s_nop 7")
    a("s_nop 3")
    for h in range(2):
        for op in mish_ops(A1, h, MU, PK + 4 * h):
            a(op)
        a("s_nop 0")
        a(f"ds_write_b128 v2, {vr(PK+4*h,4)} offset:{14336+1024*h}")
    a("s_waitcnt lgkmcnt(0)")
    a.stamp(15)
    a("s_barrier")
    a.lg = []

    def readA(n):
        a.lds(f"ds_read_b128 {vr(BR+4*(n%4),4)}, v{VA} offset:{1024*n}", f"y{n}")
    for n in range(4):
        readA(n)
    C = [(A0, A1), (W1R + 64, W1R + 80)]

    def pack_ops(mt):
        ops = []
        for j in range(4):
            ops += [f"v_cvt_pk_bf16_f32 v{MU+4*j+t}, v{C[mt][0]+4*j+t}, v{C[mt][1]+4*j+t}" for t in range(4)]
            ops.append(f"buffer_store_dwordx4 {vr(MU+4*j,4)}, v{VP}, s[28:31], s{38+mt} offen offset:{256*j} sc1")
        return ops
    fill = pack_ops(0)
    for n in range(28):
        mt, ks = divmod(n, 14)
        a.wait(lg=f"y{n}")
        for c in range(2):
            a.wait(vm=f"c{2*ks+c}")
            acc = vr(C[mt][c], 16)
            a(f"v_mfma_f32_32x32x16_bf16 {acc}, {vr(w2reg(2*ks+c),4)}, {vr(BR+4*(n%4),4)}, {'0' if ks == 0 else acc}")
            if mt == 1 and ks >= 1 and fill:
                for _ in range(3):
                    if fill:
                        a(fill.pop(0))
        if n + 4 < 28:
            readA(n + 4)
    assert not fill
    a("s_nop 7")
    a("s_nop 3")
    for op in pack_ops(1):
        a(op)
    a.stamp(16)
    a(f"s_branch L_{name}_pub3")
    a.label(f"L_{name}_idle7")
    a("s_cmp_lg_u32 s2, 0")
    a(f"s_cbranch_scc1 L_{name}_noep")
    a("v_mov_b32 v2, s48")
    a("v_mov_b32 v3, 0")
    a(f"s_mov_b32 s34, {EP_OFF}")
    a("s_mov_b64 exec, 1")
    a("buffer_store_dword v2, v3, s[28:31], s34 offen sc1")
    a("s_mov_b64 exec, -1")
    a.label(f"L_{name}_noep")
    a("s_barrier")
    a.label(f"L_{name}_pub3")
    a(f"s_mov_b32 s36, {SPIN2}")
    a(f"s_mov_b32 s34, {f32hex(LN2)}")
    for p in range(8):
        a(f"s_add_u32 s{4+p}, s23, {7168*p}")
    a("s_waitcnt vmcnt(0)")
    a("s_barrier")
    a.stamp(17)
    a.vm = []
    R, SM = 32, 16
    a("s_mov_b32 exec_hi, 0xffffff")
    for p in range(8):
        a.vmem(f"buffer_load_dwordx4 {vr(R+4*p,4)}, v{VL16}, s[28:31], s{4+p} offen sc1", f"p{p}")
    for p in range(8):
        a.wait(vm=f"p{p}")
        a.label(f"L_{name}_pc{p}")
        a(f"v_max3_u32 v2, v{R+4*p}, v{R+4*p+1}, v{R+4*p+2}")
        a(f"v_max_u32 v2, v2, v{R+4*p+3}")
        a("v_cmp_eq_u32 vcc, -1, v2")
        a(f"s_cbranch_vccz L_{name}_pk{p}")
        a("s_cmp_eq_u32 s36, 0")
        a(f"s_cbranch_scc1 L_{name}_pk{p}")
        a("s_sub_u32 s36, s36, 1")
        a(f"buffer_load_dwordx4 {vr(R+4*p,4)}, v{VL16}, s[28:31], s{4+p} offen sc1")
        a("s_waitcnt vmcnt(0)")
        a(f"s_branch L_{name}_pc{p}")
        a.label(f"L_{name}_pk{p}")
        for t in range(4):
            if p == 0:
                a(f"v_lshlrev_b32 v{SM+2*t}, 16, v{R+t}")
                a(f"v_and_b32 v{SM+2*t+1}, 0xffff0000, v{R+t}")
            else:
                a(f"v_lshlrev_b32 v{SM+8+2*t}, 16, v{R+4*p+t}")
                a(f"v_and_b32 v{SM+8+2*t+1}, 0xffff0000, v{R+4*p+t}")
        if p > 0:
            for t in range(4):
                a(f"v_pk_add_f32 {vr(SM+2*t,2)}, {vr(SM+2*t,2)}, {vr(SM+8+2*t,2)}")
    for e in range(8):
        a(f"v_fmac_f32 v{el(e)}, s34, v{SM+e}")
    for u in range(4):
        a(f"v_cvt_pk_bf16_f32 v{SM+u}, v{el(2*u)}, v{el(2*u+1)}")
    a(f"buffer_store_dwordx4 {vr(SM,4)}, v0, s[24:27], s44 offen")
    a.stamp(18)


def gen_pk(name):
    a = Asm()
    a("s_cmp_ge_u32 s2, 256")
    a(f"s_cbranch_scc1 L_{name}_end")
    a.stamp(0)
    a("s_load_dwordx4 s[4:7], s[0:1], 0")
    a("s_load_dwordx4 s[8:11], s[0:1], 16")
    a("s_load_dwordx2 s[12:13], s[0:1], 32")
    a("s_load_dwordx4 s[40:43], s[0:1], 48")
    a("s_load_dwordx4 s[44:47], s[0:1], 64")
    a("s_load_dwordx2 s[14:15], s[0:1], 88")
    a("v_lshrrev_b32 v2, 6, v0")
    a("v_and_b32 v1, 63, v0")
    a("v_readfirstlane_b32 s3, v2")
    phase_a(a, name)
    sync1(a, name)
    attention(a, name)
    epilogue(a, name)
    ffn(a, name)
    a.end()
    a.label(f"L_{name}_end")
    a("s_endpgm")
    slow_path(a, name)
    a.label(f"L_{name}_last")
    return a.text(), kernel_desc(name, 256, 64)
```
